```python
import torch

def _softmax(x, axis=-1):
    return torch.softmax(x, dim=axis)
def _gelu(x):
    return torch.nn.functional.gelu(x, approximate="tanh")
def _silu(x):
    return torch.nn.functional.silu(x)
def _sigmoid(x):
    return torch.sigmoid(x)
def _layernorm(x, axis=-1, eps=1e-5):
    m = x.mean(dim=axis, keepdim=True)
    v = x.var(dim=axis, keepdim=True, unbiased=False)
    return (x - m) / torch.sqrt(v + eps)
def _scatter_add(tgt, idx, src, axis=0):
    return tgt.clone().index_add_(axis, idx, src)
def _segment_sum(src, seg, n):
    out = torch.zeros((n,) + src.shape[1:], dtype=src.dtype)
    return out.index_add_(0, seg, src)
def _pad(x, pw):
    flat = tuple(v for pair in reversed(pw) for v in pair)
    return torch.nn.functional.pad(x, flat)

kernel_name = 'gated_mix__softmax_full_mha__linear_kernel_hedgehog__prompt'

def setup_inputs():

    _w = (lambda a: (lambda t: t.to(torch.bfloat16) if t.is_floating_point() else t)(torch.as_tensor(a)))
    def _A_setup():
        B, S, D = 1, 2048, 640
        return {
            "x": _w((lambda *s: torch.randn(*s, dtype=torch.bfloat16) * 0.05)(B, S, D)),
            "wqkv": _w((lambda *s: torch.randn(*s, dtype=torch.bfloat16) * 0.8)(D, 3 * D)),
            "wo": _w((lambda *s: torch.randn(*s, dtype=torch.bfloat16) * 0.05)(D, D)),
        }
    _A_in = _A_setup()

    def _B_setup():
        B, S, D, H = 1, 2048, 640, 32
        Dh = D // H
        return {
            "x": _w((lambda *s: torch.randn(*s, dtype=torch.bfloat16) * 0.05)(B, S, D)),
            "wqkv": _w((lambda *s: torch.randn(*s, dtype=torch.bfloat16) * 1.6)(D, 3 * D)),
            "w_phi": _w((lambda *s: torch.randn(*s, dtype=torch.bfloat16) * 1.6)(H, Dh, Dh) * (Dh ** -0.5)),
            "wo": _w((lambda *s: torch.randn(*s, dtype=torch.bfloat16) * 0.05)(D, D)),
        }
    _B_in = _B_setup()

    return {
        "A_x": _A_in["x"],
        "A_wqkv": _A_in["wqkv"],
        "A_wo": _A_in["wo"],
        "B_x": _B_in["x"],
        "B_wqkv": _B_in["wqkv"],
        "B_w_phi": _B_in["w_phi"],
        "B_wo": _B_in["wo"],
        "gate_w": _w((lambda *s: torch.randn(*s, dtype=torch.bfloat16) * 0.05)(640) * 16.0),
    }

def reference(A_x, A_wqkv, A_wo, B_x, B_wqkv, B_w_phi, B_wo, gate_w):
    def _A_ref(x, wqkv, wo):
        B, S, D = x.shape
        H = 32; Dh = D // H
        qkv = (lambda x, *d: x.permute(*d))((x @ wqkv).reshape(B, S, 3, H, Dh), 2, 0, 3, 1, 4)
        q, k, v = qkv[0], qkv[1], qkv[2]
        scale = Dh ** -0.5
        scores = torch.einsum("bhqd,bhkd->bhqk", q, k) * scale
        p = _softmax(scores, axis=-1)
        o = torch.einsum("bhqk,bhkd->bhqd", p, v)
        return (lambda x, *d: x.permute(*d))(o, 0, 2, 1, 3).reshape(B, S, D) @ wo

    def _B_ref(x, wqkv, w_phi, wo):
        B, S, D = x.shape
        H = 32; Dh = D // H
        qkv = (lambda x, *d: x.permute(*d))((x @ wqkv).reshape(B, S, 3, H, Dh), 2, 0, 3, 1, 4)
        q, k, v = qkv[0], qkv[1], qkv[2]
        pq = torch.einsum("bhsd,hdf->bhsf", q, w_phi)
        pk = torch.einsum("bhsd,hdf->bhsf", k, w_phi)
        phi_q = torch.concatenate([_softmax(pq, axis=-1), _softmax(-pq, axis=-1)], axis=-1)
        phi_k = torch.concatenate([_softmax(pk, axis=-1), _softmax(-pk, axis=-1)], axis=-1)
        kv = torch.einsum("bhsf,bhsd->bhfd", phi_k, v)
        z  = torch.einsum("bhsf->bhf", phi_k)
        num = torch.einsum("bhqf,bhfd->bhqd", phi_q, kv)
        den = torch.einsum("bhqf,bhf->bhq", phi_q, z)[..., None] + 1e-6
        o = num / den
        return (lambda x, *d: x.permute(*d))(o, 0, 2, 1, 3).reshape(B, S, D) @ wo

    x = A_x
    g = _sigmoid((x * gate_w).sum(-1, keepdims=True))
    a = _A_ref(x, A_wqkv, A_wo)
    b = _B_ref(x, B_wqkv, B_w_phi, B_wo)
    return g * a + (1 - g) * b
```

```python
import sys
from layout import *
def build(kernels, launches, path):
    hdr = open(f"cdna_kernels/{NAME}.s.ref").read().split("\n")
    top = [l for l in hdr if l.startswith(";") and "@launch" not in l and "Override" not in l and "grid=ceil" not in l]
    i = next(n for n,l in enumerate(top) if l.strip().startswith("; v1 =")) if any(l.strip().startswith("; v1 =") for l in top) else len(top)
    top = top[:i]
    out = top + [f"; @launch kernel={n} grid=({g},1,1) block=({b},1,1) lds={l}" for n, g, b, l in launches]
    out.append('.amdgcn_target "amdgcn-amd-amdhsa--gfx950"')
    out.append(".text")
    s = "\n".join(out) + "\n"
    for t, d in kernels:
        s += t + d
    open(path, "w").write(s)
```

```python
import re

TRANS = ("v_exp_f32", "v_log_f32", "v_rcp_f32", "v_rsq_f32", "v_sqrt_f32", "v_sin_f32", "v_cos_f32",
         "v_exp_f16", "v_log_f16", "v_rcp_f16", "v_rcp_iflag_f32")

def expand(tok):
    tok = tok.strip()
    neg = tok.lstrip('-')
    m = re.fullmatch(r"(?:abs\()?\|?([vsa])\[(\d+):(\d+)\]\|?\)?", neg)
    if m:
        return [f"{m.group(1)}{i}" for i in range(int(m.group(2)), int(m.group(3)) + 1)]
    m = re.fullmatch(r"(?:abs\()?\|?([vsa])(\d+)\|?\)?", neg)
    if m:
        return [f"{m.group(1)}{m.group(2)}"]
    if neg in ("vcc", "exec", "m0", "scc"):
        return [neg]
    if neg in ("vcc_lo", "vcc_hi"): return ["vcc"]
    if neg in ("exec_lo", "exec_hi"): return ["exec"]
    return []

class Ins:
    __slots__ = ("text", "op", "kind", "wr", "rd", "pos", "passes", "srcC", "srcAB", "trans", "dpp", "wide")

def mfma_passes(op):
    if "32x32" in op: return 8
    if "16x16" in op: return 4
    raise ValueError(op)

def parse(text):
    t = text.split(";")[0].strip()
    i = Ins(); i.text = text; i.srcC = []; i.srcAB = []; i.passes = 0; i.trans = False; i.dpp = False; i.wide = False
    parts = t.split(None, 1)
    op = parts[0]; i.op = op
    rest = parts[1] if len(parts) > 1 else ""
    ops = [o.strip() for o in re.split(r",(?![^\[]*\])", rest)] if rest else []
    mods = ""
    if ops:
        l = ops[-1].split()
        if l:
            ops[-1] = l[0]; mods = " ".join(l[1:])
    i.wr = []; i.rd = []
    if op.startswith("v_mfma"):
        i.kind = "mfma"; i.passes = mfma_passes(op)
        i.wr = expand(ops[0]); i.srcAB = expand(ops[1]) + expand(ops[2]); i.srcC = expand(ops[3])
        i.rd = i.srcAB + i.srcC
    elif op.startswith("v_"):
        i.kind = "valu"
        base = op.replace("_e32", "").replace("_e64", "")
        i.trans = base in TRANS
        i.dpp = ("dpp" in op) or ("row_" in mods) or ("quad_perm" in mods)
        if base.startswith("v_cmp"):
            i.wr = expand(ops[0]); i.rd = sum((expand(o) for o in ops[1:]), [])
            if base.startswith("v_cmpx"): i.wr += ["exec"]
        elif base.startswith("v_permlane") and "swap" in base:
            i.wr = expand(ops[0]) + expand(ops[1]); i.rd = list(i.wr); i.kind = "permlane"
        elif base in ("v_readfirstlane_b32", "v_readlane_b32"):
            i.wr = expand(ops[0]); i.rd = sum((expand(o) for o in ops[1:]), []); i.kind = "readlane"
        elif base in ("v_add_co_u32", "v_sub_co_u32", "v_addc_co_u32", "v_subb_co_u32", "v_subrev_co_u32"):
            i.wr = expand(ops[0]) + expand(ops[1]); i.rd = sum((expand(o) for o in ops[2:]), [])
        elif base in ("v_fmac_f32", "v_pk_fmac_f16", "v_dot2c_f32_bf16"):
            i.wr = expand(ops[0]); i.rd = sum((expand(o) for o in ops), [])
        elif base == "v_cndmask_b32" and len(ops) == 3:
            i.wr = expand(ops[0]); i.rd = expand(ops[1]) + expand(ops[2]) + ["vcc"]
        else:
            i.wr = expand(ops[0]); i.rd = sum((expand(o) for o in ops[1:]), [])
            if "UNUSED_PRESERVE" in mods or "op_sel" in mods:
                i.rd += i.wr
    elif op.startswith("buffer_") or op.startswith("global_") or op.startswith("ds_"):
        i.kind = "ds" if op.startswith("ds_") else "vmem"
        isld = ("load" in op or "read" in op or "bpermute" in op or "swizzle" in op or "permute" in op)
        lds = (" lds" in (" " + mods + " ")) or ("_lds_" in op)
        if isld and not lds:
            i.wr = expand(ops[0]); i.rd = sum((expand(o) for o in ops[1:]), [])
            if "d16" in op: i.rd += i.wr
        else:
            i.rd = sum((expand(o) for o in ops), [])
            if lds: i.rd += ["m0"]; i.kind = "dma"
            if "atomic" in op and "sc0" in mods: i.wr = expand(ops[0])
            if ("x4" in op or "x3" in op or "b128" in op or "b96" in op) and not lds and not isld and i.kind == "vmem":
                i.wide = True
    elif op.startswith("s_"):
        i.kind = "salu"
        if op.startswith("s_cmp") or op.startswith("s_bitcmp"):
            i.rd = sum((expand(o) for o in ops), []); i.wr = ["scc"]
        elif op in ("s_waitcnt", "s_barrier", "s_nop", "s_endpgm", "s_branch", "s_setprio", "s_sleep") or op.startswith("s_cbranch"):
            pass
        else:
            i.wr = expand(ops[0]) if ops else []; i.rd = sum((expand(o) for o in ops[1:]), [])
            if "saveexec" in op: i.wr += ["exec"]; i.rd += ["exec"]
    else:
        raise ValueError("unknown op: " + text)
    return i

def overlap(a, b):
    return bool(set(a) & set(b))

class Asm:
    def __init__(self, hist=None, pos=0):
        self.lines = []
        self.hist = list(hist) if hist else []
        self.pos = pos
        self.nops = 0

    def raw(self, text):
        self.lines.append(text)

    def label(self, name):
        self.lines.append(name + ":")

    def need(self, i):
        req = 0
        for p in self.hist:
            d = self.pos - p.pos - 1
            n = 0
            vwr = [r for r in p.wr if r[0] in "va" and r not in ("vcc",)]
            swr = [r for r in p.wr if r[0] == "s" or r in ("vcc",)]
            if p.kind in ("valu", "permlane", "readlane"):
                if i.kind == "mfma" and overlap(vwr, i.rd): n = max(n, 2)
                if i.kind == "permlane" and overlap(vwr, i.rd): n = max(n, 2)
                if i.kind == "readlane" and overlap(vwr, i.rd): n = max(n, 1)
                if i.dpp and overlap(vwr, i.rd): n = max(n, 2)
                if p.trans and i.kind in ("valu", "permlane", "readlane") and not i.trans and overlap(vwr, i.rd + i.wr): n = max(n, 1)
                if p.trans and i.kind in ("vmem", "ds", "dma") and overlap(vwr, i.rd): n = max(n, 1)
                if swr:
                    if i.kind in ("valu", "permlane", "readlane") and overlap(swr, i.rd): n = max(n, 2)
                    if i.kind == "readlane" and overlap(swr, i.rd): n = max(n, 4)
                    if i.kind in ("vmem", "dma", "ds") and overlap(swr, i.rd): n = max(n, 5)
                    if i.kind == "salu" and overlap(swr, i.rd): n = max(n, 2)
                if "exec" in p.wr and i.kind == "mfma": n = max(n, 4)
                if "exec" in p.wr and i.kind in ("readlane", "permlane"): n = max(n, 4)
                if "exec" in p.wr and i.dpp: n = max(n, 5)
            if p.kind == "mfma":
                big = {4: 8, 8: 12}[p.passes]
                if i.kind == "mfma":
                    if overlap(p.wr, i.srcAB): n = max(n, big)
                    if overlap(p.wr, i.srcC):
                        if not (p.wr == i.srcC and p.passes == i.passes):
                            n = max(n, {4: 6, 8: 10}[p.passes])
                    elif overlap(p.wr, i.wr):
                        n = max(n, big)
                elif i.kind in ("valu", "permlane", "readlane"):
                    if overlap(p.wr, i.rd + i.wr): n = max(n, big)
                    if overlap(p.srcC, i.wr): n = max(n, {4: 3, 8: 7}[p.passes])
                elif i.kind in ("vmem", "ds", "dma"):
                    if overlap(p.wr, i.rd + i.wr): n = max(n, big)
            if p.kind == "salu" and "m0" in p.wr and i.kind == "dma": n = max(n, 1)
            if p.kind == "salu" and "exec" in p.wr and i.kind == "mfma": n = max(n, 1)
            if p.wide and overlap(p.rd, i.wr):
                n = max(n, 2)
            req = max(req, n - d)
        return req

    def emit(self, text):
        for line in text.split("\n"):
            line = line.strip()
            if not line or line.startswith(";"):
                continue
            i = parse(line)
            r = self.need(i)
            while r > 0:
                k = min(r, 16)
                self.lines.append(f"  s_nop {k-1}")
                self.pos += k; r -= k; self.nops += 1
            i.pos = self.pos
            if i.op == "s_nop":
                self.pos += int(line.split()[1].split(";")[0]) + 1
            else:
                self.pos += 1
            self.lines.append("  " + line)
            self.hist.append(i)
            if len(self.hist) > 24:
                self.hist = self.hist[-24:]

    __call__ = emit

    def csel(self, dst, x, y, tmp="s99"):
        def lit(v):
            return isinstance(v, int) and not (-16 <= v <= 64)
        if lit(x) and lit(y) and x != y:
            self.emit(f"s_mov_b32 {tmp}, {y}")
            self.emit(f"s_cselect_b32 {dst}, {x}, {tmp}")
        else:
            self.emit(f"s_cselect_b32 {dst}, {x}, {y}")

    def fence(self):
        worst = 0
        for p in self.hist:
            n = 5
            if p.kind == "mfma": n = {4: 8, 8: 12}[p.passes]
            worst = max(worst, n - (self.pos - p.pos - 1))
        while worst > 0:
            k = min(worst, 16)
            self.lines.append(f"  s_nop {k-1}"); self.pos += k; worst -= k
        self.hist = []

    def loop(self, label, bodyfn, tailfn):
        s = Asm(self.hist, self.pos)
        bodyfn(s); tailfn(s)
        n1 = len(s.lines)
        bodyfn(s); tailfn(s)
        first, second = s.lines[:n1], s.lines[n1:]
        if first != second:
            self.fence()
            s2 = Asm([], self.pos)
            bodyfn(s2); tailfn(s2); m1 = len(s2.lines)
            bodyfn(s2); tailfn(s2)
            c1, c2 = s2.lines[:m1], s2.lines[m1:]
            m2 = len(s2.lines); bodyfn(s2); tailfn(s2); c3 = s2.lines[m2:]
            assert c2 == c3, "loop not stable"
            self.label(label); self.lines += c2; self.hist = s2.hist; self.pos = s2.pos
        else:
            self.label(label); self.lines += second; self.hist = s.hist; self.pos = s.pos

    def text(self):
        return "\n".join(self.lines) + "\n"
```

```python
def emit_jobpick(a, name, njobs, lds_off, swave="s8", sx="s62", sj="s63"):
    A = a.emit
    A("s_load_dwordx2 s[64:65], s[0:1], 72")
    A("s_getreg_b32 s68, hwreg(HW_REG_XCC_ID, 0, 4)")
    A("s_and_b32 s68, s68, 7")
    A(f"v_mov_b32 v4, {lds_off}")
    A("s_waitcnt lgkmcnt(0)")
    A("s_mov_b32 s66, 256")
    A("s_mov_b32 s67, 0x00020000")
    A(f"s_cmp_lg_u32 {swave}, 0")
    A(f"s_cbranch_scc1 L_{name}_jp_wait")
    A("s_mov_b32 s69, 0")
    A("s_mov_b64 exec, 1")
    a.label(f"L_{name}_jp_loop")
    A("s_add_u32 s70, s68, s69")
    A("s_and_b32 s70, s70, 7")
    A("s_lshl_b32 s71, s70, 2")
    A("v_mov_b32 v2, s71")
    A("v_mov_b32 v3, 1")
    A("buffer_atomic_add v3, v2, s[64:67], 0 offen sc0 sc1")
    A("s_waitcnt vmcnt(0)")
    A("v_readfirstlane_b32 s71, v3")
    A(f"s_cmp_lt_u32 s71, {njobs}")
    A(f"s_cbranch_scc1 L_{name}_jp_found")
    A("s_add_u32 s69, s69, 1")
    A("s_cmp_lt_u32 s69, 8")
    A(f"s_cbranch_scc1 L_{name}_jp_loop")
    A("s_mov_b32 s71, 0xffff")
    a.label(f"L_{name}_jp_found")
    A("s_lshl_b32 s70, s70, 16")
    A("s_or_b32 s70, s70, s71")
    A("v_mov_b32 v2, s70")
    A("ds_write_b32 v4, v2")
    A("s_mov_b64 exec, -1")
    A("s_waitcnt lgkmcnt(0)")
    a.label(f"L_{name}_jp_wait")
    A("s_barrier")
    A("ds_read_b32 v2, v4")
    A("s_waitcnt lgkmcnt(0)")
    A(f"v_readfirstlane_b32 {sx}, v2")
    A(f"s_and_b32 {sj}, {sx}, 0xffff")
    A(f"s_lshr_b32 {sx}, {sx}, 16")
```

```python
from dsl import Asm
from layout import *
import math

NB = 6; NST = 20; STB = 24576
QSCALE = 0x3ea52a8e
import struct
QSCALE = struct.unpack("<I", struct.pack("<f", (20 ** -0.5) * math.log2(math.e)))[0]

def gen_k1(name="proj_kernel", prof=False, with_aux=True, exp=""):
    a = Asm(); A = a.emit
    def vr(b, n): return f"v[{b}:{b+n-1}]"
    ACC = 0 + 64
    FX = [16, 24]
    FW = [32, 40]
    XO = [[48, 49], [50, 51], [52, 53]]
    WO = [[54, 55], [56, 57], [58, 59]]
    DX0, DX1, DW = 60, 61, 62
    T = 4
    a.raw(f".globl {name}\n.p2align 8\n.type {name},@function\n{name}:")
    A("s_load_dwordx4 s[20:23], s[0:1], 0")
    A("s_load_dwordx4 s[24:27], s[0:1], 24")
    A("s_load_dwordx2 s[4:5], s[0:1], 80")
    A("s_memtime s[72:73]")
    A("v_and_b32 v1, 63, v0")
    A("v_lshrrev_b32 v2, 6, v0")
    A("v_readfirstlane_b32 s8, v2")
    from jobs import emit_jobpick
    emit_jobpick(a, name, 32, NB*STB)
    A("s_mov_b32 s84, s72")
    A("s_memtime s[86:87]")
    A("s_cmp_ge_u32 s63, 32")
    A(f"s_cbranch_scc1 L_{name}_end")
    A("s_lshr_b32 s9, s62, 2")
    A("s_bfe_u32 s10, s62, 0x10001")
    A("s_bitcmp1_b32 s62, 0")
    A(f"s_cbranch_scc1 L_{name}_h1")
    A("s_lshr_b32 s11, s63, 3")
    A("s_and_b32 s12, s63, 7")
    A(f"s_branch L_{name}_hd")
    a.label(f"L_{name}_h1")
    A("s_cmp_ge_u32 s63, 28")
    A(f"s_cbranch_scc1 L_{name}_aux")
    A("s_mul_i32 s11, s63, 9363")
    A("s_lshr_b32 s11, s11, 16")
    A("s_mul_i32 s12, s11, 7")
    A("s_sub_u32 s12, s63, s12")
    A("s_add_u32 s12, s12, 8")
    a.label(f"L_{name}_hd")
    A("s_lshl_b32 s10, s10, 2")
    A("s_add_u32 s11, s11, s10")
    A("s_lshl_b32 s85, s62, 5")
    A("s_add_u32 s85, s85, s63")
    A("s_and_b32 s13, s8, 3")
    A("s_lshr_b32 s14, s8, 2")
    A("s_waitcnt lgkmcnt(0)")
    A("s_cmp_eq_u32 s9, 0")
    A("s_mov_b32 s28, s20")
    A("s_mov_b32 s29, s21")
    A("s_cselect_b32 s32, s22, s26")
    A("s_cselect_b32 s33, s23, s27")
    A(f"s_mov_b32 s30, {2048*1280}")
    A("s_mov_b32 s31, 0x00020000")
    A(f"s_mov_b32 s34, {640*3840}")
    A("s_mov_b32 s35, 0x00020000")
    A("s_mov_b32 s6, 0x10000000")
    A("s_mov_b32 s7, 0x00020000")
    A(f"v_lshrrev_b32 v{T}, 2, v1")
    A(f"v_lshrrev_b32 v{T+1}, 4, v1")
    A(f"v_and_b32 v{T+2}, 3, v1")
    A(f"v_xor_b32 v{T+2}, v{T+2}, v{T+1}")
    A(f"v_lshlrev_b32 v{T+2}, 4, v{T+2}")
    A("s_lshl_b32 s15, s11, 8")
    A("s_lshl_b32 s16, s8, 5")
    A("s_add_u32 s15, s15, s16")
    A(f"v_add_u32 v{T}, s15, v{T}")
    A("s_movk_i32 s17, 1280")
    A(f"v_mul_lo_u32 v{T}, v{T}, s17")
    A(f"v_add_u32 v{DX0}, v{T}, v{T+2}")
    A(f"v_add_u32 v{DX1}, {16*1280}, v{DX0}")
    A(f"v_and_b32 v{T+2}, 15, v1")
    A(f"v_lshlrev_b32 v{T+3}, 2, v{T+1}")
    A(f"v_xor_b32 v{T+2}, v{T+2}, v{T+3}")
    A(f"v_lshlrev_b32 v{T+2}, 4, v{T+2}")
    A("s_lshl_b32 s16, s8, 2")
    A(f"v_add_u32 v{T+1}, s16, v{T+1}")
    A("s_movk_i32 s17, 3840")
    A(f"v_mul_lo_u32 v{T+1}, v{T+1}, s17")
    A("s_lshl_b32 s16, s12, 8")
    A(f"v_add3_u32 v{DW}, v{T+1}, v{T+2}, s16")
    A("s_lshl_b32 s18, s8, 11")
    A("s_lshl_b32 s19, s8, 10")
    A("s_add_u32 s19, s19, 16384")
    def dma(E, st):
        base = (st % NB) * STB
        E(f"s_add_u32 m0, s18, {base}")
        E(f"s_movk_i32 s36, {st*64}")
        E(f"buffer_load_dwordx4 v{DX0}, s[28:31], s36 offen lds")
        E(f"s_add_u32 m0, s18, {base+1024}")
        E(f"s_mov_b32 s37, {st*32*3840}")
        E(f"buffer_load_dwordx4 v{DX1}, s[28:31], s36 offen lds")
        E(f"s_add_u32 m0, s19, {base}")
        E("s_nop 0")
        E(f"buffer_load_dwordx4 v{DW}, s[32:35], s37 offen lds")
    for st in range(NB):
        dma(A, st)
    A(f"v_and_b32 v{T}, 31, v1")
    A(f"v_lshrrev_b32 v{T+1}, 5, v1")
    A(f"v_bfe_u32 v{T+2}, v1, 2, 2")
    A(f"v_xor_b32 v{T+2}, v{T+2}, v{T+1}")
    A(f"v_lshlrev_b32 v{T+3}, 6, v{T}")
    A("s_lshl_b32 s16, s13, 12")
    A(f"v_add_u32 v{T+3}, s16, v{T+3}")
    A(f"v_lshl_add_u32 v{XO[0][0]}, v{T+2}, 4, v{T+3}")
    A(f"v_xor_b32 v{T+2}, 2, v{T+2}")
    A(f"v_lshl_add_u32 v{XO[0][1]}, v{T+2}, 4, v{T+3}")
    A(f"v_bfe_u32 v{T}, v1, 4, 1")
    A(f"v_bfe_u32 v{T+2}, v1, 2, 2")
    A(f"v_and_b32 v{T+3}, 3, v1")
    A(f"v_lshlrev_b32 v{T+4}, 3, v{T+1}")
    A(f"v_add_u32 v{T+4}, v{T+4}, v{T+2}")
    A(f"v_lshlrev_b32 v{T+4}, 8, v{T+4}")
    A(f"v_add_u32 v{T+4}, 16384, v{T+4}")
    A(f"v_lshlrev_b32 v{T+5}, 1, v{T}")
    A(f"v_lshrrev_b32 v{T+6}, 1, v{T+3}")
    A(f"v_add_u32 v{T+5}, v{T+5}, v{T+6}")
    A(f"v_lshl_add_u32 v{T+4}, v{T+5}, 4, v{T+4}")
    A(f"v_and_b32 v{T+6}, 1, v{T+3}")
    A(f"v_lshl_add_u32 v{T+4}, v{T+6}, 3, v{T+4}")
    A(f"v_lshlrev_b32 v{T+2}, 2, v{T+2}")
    A("s_lshl_b32 s16, s14, 3")
    for ct in range(2):
        A(f"s_add_u32 s17, s16, {4*ct}")
        A(f"v_xor_b32 v{T+5}, s17, v{T+2}")
        A(f"v_lshl_add_u32 v{WO[0][ct]}, v{T+5}, 4, v{T+4}")
    for g in (1, 2):
        for i in range(2):
            A(f"v_add_u32 v{XO[g][i]}, {g*2*STB}, v{XO[0][i]}")
            A(f"v_add_u32 v{WO[g][i]}, {g*2*STB}, v{WO[0][i]}")
    for r in range(64):
        A(f"v_mov_b32 v{ACC+r}, 0")
    A("s_cmp_ge_u32 s12, 10")
    A(f"s_cbranch_scc1 L_{name}_v")

    def reads(E, st, ks, setid):
        if 'nocomp' in exp: return
        buf = st % NB; g = buf // 2; base = (buf % 2) * STB
        for rt in range(2):
            E(f"ds_read_b128 {vr(FX[setid]+4*rt,4)}, v{XO[g][ks]} offset:{base+rt*2048}")
        for ct in range(2):
            for u in range(2):
                E(f"ds_read_b64_tr_b16 {vr(FW[setid]+4*ct+2*u,2)}, v{WO[g][ct]} offset:{base+(16*ks+4*u)*256}")
    def mfmas(E, setid, vtype):
        if 'nocomp' in exp: return
        for i in range(2):
            for j in range(2):
                acc = vr(ACC + (i*2+j)*16, 16)
                if vtype:
                    E(f"v_mfma_f32_32x32x16_bf16 {acc}, {vr(FX[setid]+4*i,4)}, {vr(FW[setid]+4*j,4)}, {acc}")
                else:
                    E(f"v_mfma_f32_32x32x16_bf16 {acc}, {vr(FW[setid]+4*i,4)}, {vr(FX[setid]+4*j,4)}, {acc}")
    def mainloop(vtype):
        A("s_memtime s[72:73]")
        A(f"s_waitcnt vmcnt({3*(NB-1)})")
        A("s_barrier")
        A("s_memtime s[74:75]")
        reads(A, 0, 0, 0)
        for st in range(NST):
            reads(A, st, 1, 1)
            A("s_waitcnt lgkmcnt(6)")
            mfmas(A, 0, vtype)
            if st + 1 < NST:
                last = min(max(NB - 1, st - 2 + NB), NST - 1)
                A(f"s_waitcnt vmcnt({3*(last-(st+1))})")
                A("s_barrier")
                if st - 1 + NB < NST and st >= 1:
                    dma(A, st - 1 + NB)
                elif st == 0 and NB - 1 < NST:
                    pass
                reads(A, st + 1, 0, 0)
                A("s_waitcnt lgkmcnt(6)")
            else:
                A("s_waitcnt lgkmcnt(0)")
            mfmas(A, 1, vtype)
            if st == 9: A("s_memtime s[80:81]")
        A("s_memtime s[76:77]")
    return a, mainloop, dict(vr=vr, ACC=ACC, T=T, name=name)

def gen_k1_full(name="proj_kernel", noaux=False, exp=""):
    a, mainloop, d = gen_k1(name, exp=exp)
    A = a.emit; vr = d["vr"]; ACC = d["ACC"]; T = d["T"]
    mainloop(False)
    a.fence()
    A("v_cmp_lt_u32 s[40:41], 31, v1")
    A("s_cmp_lt_u32 s12, 5")
    a.csel("s42", 64*1536, 64*3072, "s60")
    a.csel("s43", 1536, 3072, "s60")
    A(f"s_cselect_b32 s44, {QIMG}, {KVIMG}")
    a.csel("s45", QIMGB, KVIMGB, "s60")
    A("s_cselect_b32 s46, 0, 5")
    A(f"s_cselect_b32 s47, {QSCALE}, 1.0")
    A("s_cmp_eq_u32 s9, 0")
    A("s_cselect_b32 s44, s44, s45")
    A("s_cselect_b32 s47, s47, 1.0")
    A("s_sub_u32 s46, s12, s46")
    A("s_lshl_b32 s46, s46, 5")
    A("s_lshl_b32 s48, s14, 4")
    A("s_add_u32 s46, s46, s48")
    A("s_lshl_b32 s48, s11, 3")
    A("s_lshl_b32 s49, s13, 1")
    A("s_add_u32 s48, s48, s49")
    A("s_mul_i32 s48, s48, s43")
    A("s_add_u32 s44, s44, s48")
    A(f"v_and_b32 v{T}, 31, v1")
    A(f"v_lshlrev_b32 v{T}, 4, v{T}")
    for r in range(64):
        A(f"v_mul_f32 v{ACC+r}, s47, v{ACC+r}")
    def qoff(dst, q):
        A(f"s_mul_hi_u32 s50, {q}, s52")
        A("s_lshr_b32 s50, s50, 2")
        A("s_mul_i32 s51, s50, 5")
        A(f"s_sub_u32 s51, {q}, s51")
        A(f"s_mul_i32 {dst}, s50, s42")
        A("s_lshr_b32 s53, s51, 1")
        A("s_lshl_b32 s53, s53, 9")
        A(f"s_add_u32 {dst}, {dst}, s53")
        A("s_and_b32 s53, s51, 1")
        A("s_lshl_b32 s53, s53, 3")
        A(f"s_add_u32 {dst}, {dst}, s53")
    A("s_mov_b32 s52, 0xcccccccd")
    for ct in range(2):
        for aa in range(4):
            A(f"s_add_u32 s54, s46, {8*ct+2*aa}")
            qoff("s55", "s54")
            A("s_add_u32 s54, s54, 1")
            qoff("s56", "s54")
            A(f"v_mov_b32 v{T+1}, s55")
            A(f"v_mov_b32 v{T+2}, s56")
            A(f"v_cndmask_b32 v{T+1}, v{T+1}, v{T+2}, s[40:41]")
            A(f"v_add_u32 v{T+1}, v{T+1}, v{T}")
            for rt in range(2):
                b = ACC + (ct*2+rt)*16 + 4*aa
                P = 16 + 2*((ct*8+aa*2+rt) % 8)
                A(f"v_cvt_pk_bf16_f32 v{P}, v{b}, v{b+1}")
                A(f"v_cvt_pk_bf16_f32 v{P+1}, v{b+2}, v{b+3}")
                if rt == 1:
                    A("s_add_u32 s57, s44, s43")
                    A(f"buffer_store_dwordx2 {vr(P,2)}, v{T+1}, s[4:7], s57 offen")
                else:
                    A(f"buffer_store_dwordx2 {vr(P,2)}, v{T+1}, s[4:7], s44 offen")
    A("s_waitcnt vmcnt(0)")
    A("s_memtime s[78:79]")
    A("s_waitcnt lgkmcnt(0)")
    for i, r in enumerate((84, 72, 74, 80, 76, 78, 86, 68)):
        A(f"v_mov_b32 v{16+i}, s{r}")
    A("s_lshl_b32 s82, s85, 3")
    A("s_add_u32 s82, s82, s8")
    A("s_lshl_b32 s82, s82, 5")
    A("s_add_u32 s82, s82, 0x8000000")
    A("v_mov_b32 v24, 0")
    A("s_mov_b64 exec, 1")
    A("buffer_store_dwordx4 v[16:19], v24, s[4:7], s82 offen")
    A("buffer_store_dwordx4 v[20:23], v24, s[4:7], s82 offen offset:16")
    A(f"s_branch L_{d['name']}_end")
    a.label(f"L_{d['name']}_v")
    a.fence()
    mainloop(True)
    a.fence()
    A("s_cmp_eq_u32 s9, 0")
    a.csel("s44", KVIMG, KVIMGB, "s60")
    A("s_lshl_b32 s48, s11, 3")
    A("s_lshl_b32 s49, s13, 1")
    A("s_add_u32 s48, s48, s49")
    A("s_mul_i32 s48, s48, 3072")
    A("s_add_u32 s44, s44, s48")
    A("s_add_u32 s44, s44, 1536")
    A("s_sub_u32 s46, s12, 10")
    A("s_lshl_b32 s46, s46, 7")
    A("s_lshl_b32 s48, s14, 6")
    A("s_add_u32 s46, s46, s48")
    A(f"v_and_b32 v{T}, 31, v1")
    A(f"v_lshrrev_b32 v{T+1}, 5, v1")
    A(f"v_mul_u32_u24 v{T+1}, 384, v{T+1}")
    A("s_mov_b32 s50, 52429")
    A(f"s_mov_b32 s51, {64*3072}")
    for ct in range(2):
        A(f"s_add_u32 s48, s46, {32*ct}")
        A(f"v_add_u32 v{T+2}, s48, v{T}")
        A(f"v_mul_u32_u24 v{T+3}, s50, v{T+2}")
        A(f"v_lshrrev_b32 v{T+3}, 20, v{T+3}")
        A(f"v_mul_u32_u24 v{T+4}, 20, v{T+3}")
        A(f"v_sub_u32 v{T+4}, v{T+2}, v{T+4}")
        A(f"v_mul_lo_u32 v{T+3}, v{T+3}, s51")
        A(f"v_lshl_add_u32 v{T+3}, v{T+4}, 4, v{T+3}")
        A(f"v_add_u32 v{T+3}, v{T+3}, v{T+1}")
        for rt in range(2):
            for cc in range(2):
                b = ACC + (rt*2+ct)*16 + 8*cc
                P = 16 + 4*((ct*4+rt*2+cc) % 4)
                for i in range(4):
                    A(f"v_cvt_pk_bf16_f32 v{P+i}, v{b+2*i}, v{b+2*i+1}")
                A(f"s_add_u32 s57, s44, {rt*3072+cc*768}")
                A(f"buffer_store_dwordx4 {vr(P,4)}, v{T+3}, s[4:7], s57 offen")
    A("s_waitcnt vmcnt(0)")
    A("s_memtime s[78:79]")
    A("s_waitcnt lgkmcnt(0)")
    for i, r in enumerate((84, 72, 74, 80, 76, 78, 86, 68)):
        A(f"v_mov_b32 v{16+i}, s{r}")
    A("s_lshl_b32 s82, s85, 3")
    A("s_add_u32 s82, s82, s8")
    A("s_lshl_b32 s82, s82, 5")
    A("s_add_u32 s82, s82, 0x8000000")
    A("v_mov_b32 v24, 0")
    A("s_mov_b64 exec, 1")
    A("buffer_store_dwordx4 v[16:19], v24, s[4:7], s82 offen")
    A("buffer_store_dwordx4 v[20:23], v24, s[4:7], s82 offen offset:16")
    A(f"s_branch L_{d['name']}_end")
    a.label(f"L_{d['name']}_aux")
    a.fence()
    from k1aux import gen_aux
    if not noaux: gen_aux(a, d['name'])
    a.label(f"L_{d['name']}_end")
    A("s_endpgm")
    name = d['name']
    desc = f""".section .rodata,"a"
.p2align 6
.amdhsa_kernel {name}
  .amdhsa_next_free_vgpr 128
  .amdhsa_next_free_sgpr 102
  .amdhsa_accum_offset 128
  .amdhsa_group_segment_fixed_size 0
  .amdhsa_kernarg_size 88
  .amdhsa_user_sgpr_count 2
  .amdhsa_user_sgpr_kernarg_segment_ptr 1
  .amdhsa_system_sgpr_workgroup_id_x 1
.end_amdhsa_kernel
.text
"""
    return a.text(), desc, a.nops
```

```python
from layout import *
def gen_aux(a, name):
    A = a.emit
    def vr(b, n): return f"v[{b}:{b+n-1}]"
    A("s_lshr_b32 s9, s62, 1")
    A("s_lshl_b32 s9, s9, 2")
    A("s_add_u32 s9, s9, s63")
    A("s_sub_u32 s9, s9, 28")
    A("s_load_dwordx2 s[24:25], s[0:1], 56")
    A("s_load_dwordx2 s[26:27], s[0:1], 16")
    A("s_load_dwordx2 s[36:37], s[0:1], 48")
    A("s_waitcnt lgkmcnt(0)")
    A("s_mov_b32 s6, 0x10000000")
    A("s_mov_b32 s7, 0x00020000")
    A("s_mov_b32 s28, s20"); A("s_mov_b32 s29, s21"); A(f"s_mov_b32 s30, {2048*1280}"); A("s_mov_b32 s31, 0x00020000")
    A("s_mov_b32 s32, s24"); A("s_mov_b32 s33, s25"); A("s_mov_b32 s34, 1280"); A("s_mov_b32 s35, 0x00020000")
    A("v_lshrrev_b32 v2, 2, v1")
    A("v_and_b32 v3, 3, v1")
    A("s_lshl_b32 s10, s9, 7")
    A("s_lshl_b32 s11, s8, 4")
    A("s_add_u32 s10, s10, s11")
    A("v_add_u32 v2, s10, v2")
    A("s_movk_i32 s11, 1280")
    A("v_mul_lo_u32 v4, v2, s11")
    A("v_mul_u32_u24 v5, 320, v3")
    A("v_add_u32 v4, v4, v5")
    A("v_mov_b32 v6, 0")
    for half in range(2):
        for i in range(10):
            A(f"buffer_load_dwordx4 {vr(16+4*i,4)}, v4, s[28:31], 0 offen offset:{(half*10+i)*16}")
            A(f"buffer_load_dwordx4 {vr(64+4*i,4)}, v5, s[32:35], 0 offen offset:{(half*10+i)*16}")
        A("s_waitcnt vmcnt(0)")
        for i in range(40):
            A(f"v_dot2_f32_bf16 v6, v{16+i}, v{64+i}, v6")
    A("s_nop 3")
    A("v_add_f32_dpp v7, v6, v6 quad_perm:[1,0,3,2] row_mask:0xf bank_mask:0xf")
    A("v_add_f32_dpp v6, v7, v7 quad_perm:[2,3,0,1] row_mask:0xf bank_mask:0xf")
    A("v_mul_f32 v6, 0xbfb8aa3b, v6")
    A("v_exp_f32 v6, v6")
    A("v_add_f32 v6, 1.0, v6")
    A("v_rcp_f32 v6, v6")
    A("v_lshlrev_b32 v7, 2, v2")
    A(f"s_mov_b32 s11, {GATE}")
    A("v_cmp_eq_u32 vcc, 0, v3")
    A("s_and_saveexec_b64 s[12:13], vcc")
    A("buffer_store_dword v6, v7, s[4:7], s11 offen")
    A("s_mov_b64 exec, s[12:13]")
    A("v_lshlrev_b32 v8, 4, v1")
    A("v_add_u32 v8, 1032, v8")
    A("v_subrev_u32 v9, 32, v1")
    A("v_lshrrev_b32 v10, 2, v9")
    A("v_and_b32 v11, 3, v9")
    A("v_mul_u32_u24 v10, 384, v10")
    A("v_lshl_add_u32 v10, v11, 4, v10")
    A("v_add_u32 v10, 1856, v10")
    A("v_mov_b32 v12, 0x3f80")
    A("v_mov_b32 v13, 0")
    A("v_cmp_eq_u32 vcc, 0, v11")
    A("v_mov_b32 v14, 0x3f803f80")
    for i in range(4):
        A(f"v_cndmask_b32 v{16+i}, 0, v14, vcc")
    A("s_lshl_b32 s10, s9, 3")
    A("s_add_u32 s10, s10, s8")
    A("s_lshl_b32 s10, s10, 5")
    A("s_cmp_ge_u32 s10, 2048")
    a.csel("s11", KVIMGB - 2048*3072, KVIMG, "s60")
    A("s_mul_i32 s10, s10, 3072")
    A("s_add_u32 s11, s11, s10")
    A("s_mov_b32 s14, 0")
    a.label(f"L_{name}_cst")
    A("s_mov_b32 exec_lo, -1"); A("s_mov_b32 exec_hi, 0")
    A("buffer_store_dwordx2 v[12:13], v8, s[4:7], s11 offen")
    A("s_mov_b32 exec_lo, 0"); A("s_mov_b32 exec_hi, 0xffff")
    A("buffer_store_dwordx4 v[16:19], v10, s[4:7], s11 offen")
    A("s_add_u32 s11, s11, 3072")
    A("s_add_u32 s14, s14, 1")
    A("s_cmp_lt_u32 s14, 32")
    A(f"s_cbranch_scc1 L_{name}_cst")
    A("s_mov_b64 exec, -1")
    A("s_mov_b32 s15, s9")
    A("v_lshrrev_b32 v2, 4, v1")
    A("v_bfe_u32 v3, v1, 2, 2")
    A("v_and_b32 v4, 3, v1")
    A("v_lshl_add_u32 v2, v2, 3, v3")
    A("v_mul_u32_u24 v2, 1280, v2")
    A("v_lshl_add_u32 v2, v4, 3, v2")
    A("s_lshl_b32 s16, s8, 5")
    A("v_add_u32 v2, s16, v2")
    A("v_lshlrev_b32 v5, 4, v1")
    A("s_mul_i32 s17, s8, 5120")
    A("v_add_u32 v6, s17, v5")
    a.label(f"L_{name}_wot")
    A("s_cmp_ge_u32 s15, 20")
    A("s_cselect_b32 s28, s36, s26")
    A("s_cselect_b32 s29, s37, s27")
    A("s_cselect_b32 s18, 20, 0")
    A(f"s_mov_b32 s30, {640*1280}")
    A("s_mov_b32 s31, 0x00020000")
    A("s_sub_u32 s18, s15, s18")
    A("s_mul_i32 s18, s18, 40960")
    A("s_barrier")
    A("s_mov_b32 m0, s17")
    for p in range(4):
        A(f"buffer_load_dwordx4 v6, s[28:31], s18 offen offset:{p*1024} lds")
    A("s_add_u32 m0, s17, 4096")
    A("s_add_u32 s19, s18, 4096")
    A("buffer_load_dwordx4 v6, s[28:31], s19 offen lds")
    A("s_waitcnt vmcnt(0)")
    A("s_barrier")
    for i in range(5):
        for u in range(2):
            A(f"ds_read_b64_tr_b16 {vr(16+4*i+2*u,2)}, v2 offset:{u*4*1280+i*256}")
    A("s_waitcnt lgkmcnt(0)")
    A("s_mul_i32 s19, s8, 40")
    A("s_add_u32 s19, s19, s15")
    A("s_lshl_b32 s19, s19, 10")
    A(f"s_add_u32 s19, s19, {WOT}")
    for i in range(5):
        A(f"buffer_store_dwordx4 {vr(16+4*i,4)}, v5, s[4:7], s19 offen")
        A(f"s_add_u32 s19, s19, {8*40*1024}")
    A("s_add_u32 s15, s15, 16")
    A("s_cmp_lt_u32 s15, 40")
    A(f"s_cbranch_scc1 L_{name}_wot")
```

```python
from dsl import Asm
from layout import *

STAGE_TILES = 8
TILE_B = 3072
STAGE_B = STAGE_TILES * TILE_B
NSTAGE = 64 // STAGE_TILES
LDS_KV = 0
LDS_E = 8192
LDS_JOB = 28672
LDS_TR = 32768
RING = 65536
LDS_TOTAL = RING + 3 * STAGE_B
DEBUGZ = False
LOG2E = 0x3fb8aa3b

def gen_fm(a, name, vr, lK1, lK2, lV):
    A = a.emit
    Q1, Q2, K1, K2, V = 16, 20, 22, 26, 28
    W1, W2 = 36, 40
    Z = 48
    KVP, KVN = 64, 80
    T = 96
    X = 112
    A("s_memtime s[72:73]")
    A("s_lshl_b32 s54, s9, 6")
    A("s_add_u32 s54, s54, s19")
    A("s_mul_i32 s55, s54, 1536")
    A(f"s_add_u32 s55, s55, {QIMGB}")
    A("s_mul_i32 s56, s54, 3072")
    A(f"s_add_u32 s56, s56, {KVIMGB}")
    A(f"buffer_load_dwordx4 {vr(Q1,4)}, v{lK1}, s[4:7], s55 offen")
    A(f"buffer_load_dwordx2 {vr(Q2,2)}, v{lK2}, s[4:7], s55 offen")
    A(f"buffer_load_dwordx4 {vr(K1,4)}, v{lK1}, s[4:7], s56 offen")
    A(f"buffer_load_dwordx2 {vr(K2,2)}, v{lK2}, s[4:7], s56 offen")
    A(f"buffer_load_dwordx4 {vr(V,4)}, v{lV}, s[4:7], s56 offen")
    A(f"buffer_load_dwordx4 {vr(V+4,4)}, v{lV}, s[4:7], s56 offen offset:768")
    A("s_mul_i32 s57, s9, 800")
    A("s_add_u32 s44, s44, s57")
    A("s_addc_u32 s45, s45, 0")
    A("s_mov_b32 s46, 800")
    A("s_mov_b32 s47, 0x00020000")
    A(f"v_subrev_u32 v{X}, 2, v2")
    A(f"v_cmp_gt_u32 vcc, 18, v2")
    A(f"v_cndmask_b32 v{X}, v{X}, v2, vcc")
    A(f"v_subrev_u32 v{X+1}, 18, v2")
    A(f"v_cmp_gt_u32 vcc, 2, v{X+1}")
    A(f"v_cmp_lt_u32 s[58:59], 21, v2")
    A("s_or_b64 vcc, vcc, s[58:59]")
    A(f"v_lshlrev_b32 v{X}, 1, v{X}")
    A(f"v_mul_u32_u24 v{X+2}, 320, v3")
    A(f"v_add_u32 v{X+2}, v{X+2}, v{X}")
    A(f"v_mov_b32 v{X+3}, 0x10000")
    A(f"v_cndmask_b32 v{X+2}, v{X+2}, v{X+3}, vcc")
    for t in range(8):
        A(f"buffer_load_ushort v{64+t}, v{X+2}, s[44:47], 0 offen offset:{t*40}")
    A(f"v_add_u32 v{X+4}, 640, v{X}")
    A("s_or_b64 vcc, vcc, s[16:17]")
    A(f"v_cndmask_b32 v{X+4}, v{X+4}, v{X+3}, vcc")
    for t in range(4):
        A(f"buffer_load_ushort v{72+t}, v{X+4}, s[44:47], 0 offen offset:{t*40}")
    A("s_waitcnt vmcnt(0)")
    A("s_memtime s[74:75]")
    A(f"v_cndmask_b32 v{Q2}, v{Q2}, 0, s[16:17]")
    A(f"v_cndmask_b32 v{Q2+1}, v{Q2+1}, 0, s[16:17]")
    for i in range(4):
        A(f"v_lshl_or_b32 v{W1+i}, v{65+2*i}, 16, v{64+2*i}")
    for i in range(2):
        A(f"v_lshl_or_b32 v{W2+i}, v{73+2*i}, 16, v{72+2*i}")
    A(f"s_mov_b32 s57, {LOG2E}")
    A("s_lshl_b32 s58, s8, 12")
    A(f"s_add_u32 s58, s58, {LDS_TR}")
    for side in ("q", "k"):
        B1, B2 = (Q1, Q2) if side == "q" else (K1, K2)
        A(f"v_mfma_f32_32x32x16_bf16 {vr(Z,16)}, {vr(W1,4)}, {vr(B1,4)}, 0")
        A(f"v_mfma_f32_32x32x8bf16_1k {vr(Z,16)}, {vr(W2,2)}, {vr(B2,2)}, {vr(Z,16)}")
        mx, mn, t1 = X, X+1, X+2
        if side == "k" and DEBUGZ:
            a.fence()
            A("s_lshl_b32 s60, s53, 3")
            A("s_add_u32 s60, s60, s8")
            A("s_lshl_b32 s60, s60, 13")
            A("s_add_u32 s60, s60, 0x9000000")
            A(f"v_lshlrev_b32 v{X}, 2, v1")
            for r in range(16):
                A(f"buffer_store_dword v{Z+r}, v{X}, s[4:7], s60 offen offset:{r*256}")
            for r in range(4):
                A(f"buffer_store_dword v{W1+r}, v{X}, s[4:7], s60 offen offset:{4096-1024+r*256}")
        A(f"v_max3_f32 v{mx}, v{Z}, v{Z+1}, v{Z+2}")
        A(f"v_min3_f32 v{mn}, v{Z}, v{Z+1}, v{Z+2}")
        for r in (3, 5, 7):
            A(f"v_max3_f32 v{mx}, v{mx}, v{Z+r}, v{Z+r+1}")
            A(f"v_min3_f32 v{mn}, v{mn}, v{Z+r}, v{Z+r+1}")
        A(f"v_max_f32 v{mx}, v{mx}, v{Z+9}")
        A(f"v_min_f32 v{mn}, v{mn}, v{Z+9}")
        for reg, op in ((mx, "v_max_f32"), (mn, "v_min_f32")):
            A(f"v_mov_b32 v{t1}, v{reg}")
            A(f"v_permlane32_swap_b32 v{reg}, v{t1}")
            A(f"{op} v{reg}, v{reg}, v{t1}")
        A(f"v_mul_f32 v{mx}, s57, v{mx}")
        A(f"v_mul_f32 v{mn}, s57, v{mn}")
        EP, EN = 64, 80
        for r in range(10):
            A(f"v_fma_f32 v{EP+r}, v{Z+r}, s57, -v{mx}")
            A(f"v_fma_f32 v{EN+r}, -v{Z+r}, s57, v{mn}")
        for r in range(10):
            A(f"v_exp_f32 v{EP+r}, v{EP+r}")
            A(f"v_exp_f32 v{EN+r}, v{EN+r}")
        if side == "k":
            for E_, sreg in ((EP, X+3), (EN, X+4)):
                A(f"v_add_f32 v{sreg}, v{E_}, v{E_+1}")
                for r in range(2, 10):
                    A(f"v_add_f32 v{sreg}, v{sreg}, v{E_+r}")
                A(f"v_mov_b32 v{t1}, v{sreg}")
                A(f"v_permlane32_swap_b32 v{sreg}, v{t1}")
                A(f"v_add_f32 v{sreg}, v{sreg}, v{t1}")
                A(f"v_rcp_f32 v{sreg}, v{sreg}")
                for r in range(10):
                    A(f"v_mul_f32 v{E_+r}, v{E_+r}, v{sreg}")
        PK = Z
        for si, E_ in enumerate((EP, EN)):
            for i in range(5):
                A(f"v_cvt_pk_bf16_f32 v{PK+6*si+i}, v{E_+2*i}, v{E_+2*i+1}")
            A(f"v_mov_b32 v{PK+6*si+5}, 0")
        if side == "q":
            A("s_mul_i32 s59, s8, 2560")
            A(f"s_add_u32 s59, s59, {LDS_E}")
            A(f"v_lshlrev_b32 v{t1}, 2, v1")
            A(f"v_add_u32 v{t1}, s59, v{t1}")
            for si in range(2):
                for i in range(5):
                    A(f"ds_write_b32 v{t1}, v{PK+6*si+i} offset:{(si*5+i)*256}")
        else:
            A(f"v_lshlrev_b32 v{t1}, 6, v2")
            A(f"v_lshl_add_u32 v{t1}, v3, 3, v{t1}")
            A(f"v_add_u32 v{t1}, s58, v{t1}")
            for si in range(2):
                for aa in range(3):
                    A(f"ds_write_b64 v{t1}, {vr(PK+6*si+2*aa,2)} offset:{si*2048+aa*16}")
            A(f"v_bfe_u32 v{X+5}, v1, 2, 2")
            A(f"v_lshl_add_u32 v{X+5}, v3, 2, v{X+5}")
            A(f"v_lshlrev_b32 v{X+5}, 6, v{X+5}")
            A(f"v_bfe_u32 v{X+6}, v1, 4, 1")
            A(f"v_lshl_add_u32 v{X+5}, v{X+6}, 5, v{X+5}")
            A(f"v_and_b32 v{X+6}, 3, v1")
            A(f"v_lshl_add_u32 v{X+5}, v{X+6}, 3, v{X+5}")
    A("s_waitcnt lgkmcnt(0)")
    A("s_memtime s[76:77]")
    A("s_barrier")
    A("s_memtime s[78:79]")
    A("s_cmp_ge_u32 s8, 2")
    A(f"s_cbranch_scc1 L_{name}_nosig")
    A("s_lshl_b32 s54, s9, 6")
    A("s_lshl_b32 s55, s10, 3")
    A("s_add_u32 s54, s54, s55")
    A("s_mul_i32 s56, s54, 3072")
    A(f"s_add_u32 s56, s56, {KVIMGB}")
    VF = 16
    for t in range(8):
        A(f"buffer_load_dwordx4 {vr(VF+8*t,4)}, v{lV}, s[4:7], s56 offen")
        A(f"buffer_load_dwordx4 {vr(VF+8*t+4,4)}, v{lV}, s[4:7], s56 offen offset:768")
        A("s_add_u32 s56, s56, 3072")
    A("s_lshl_b32 s58, s8, 11")
    A(f"s_add_u32 s58, s58, {LDS_TR}")
    A(f"v_add_u32 v{X+5}, s58, v{X+5}")
    ACC = 96 - 16
    BF = 96
    for t in range(8):
        b = X + 8
        for c in range(2):
            for u in range(2):
                A(f"ds_read_b64_tr_b16 {vr(b+4*c+2*u,2)}, v{X+5} offset:{t*4096+(16*c+8*u)*64}")
        if t == 0: A("s_waitcnt vmcnt(0)")
        A("s_waitcnt lgkmcnt(0)")
        cc = "0" if t == 0 else vr(ACC,16)
        A(f"v_mfma_f32_32x32x16_bf16 {vr(ACC,16)}, {vr(VF+8*t,4)}, {vr(b,4)}, {cc}")
        A(f"v_mfma_f32_32x32x16_bf16 {vr(ACC,16)}, {vr(VF+8*t+4,4)}, {vr(b+4,4)}, {vr(ACC,16)}")
    A("s_lshl_b32 s54, s9, 3")
    A("s_add_u32 s54, s54, s10")
    A("s_lshl_b32 s54, s54, 13")
    A("s_lshl_b32 s55, s8, 12")
    A("s_add_u32 s54, s54, s55")
    A(f"s_add_u32 s54, s54, {KVSUM}")
    A(f"v_lshlrev_b32 v{X}, 2, v1")
    for r in range(12):
        A(f"buffer_store_dword v{ACC+r}, v{X}, s[4:7], s54 offen offset:{r*256} sc0 sc1")
    A("s_waitcnt vmcnt(0)")
    A("s_lshl_b32 s54, s9, 2")
    A("s_add_u32 s54, s54, 64")
    A(f"v_mov_b32 v{X}, s54")
    A(f"v_mov_b32 v{X+1}, 1")
    A("s_mov_b64 exec, 1")
    A(f"buffer_atomic_add v{X+1}, v{X}, s[64:67], 0 offen sc1")
    A("s_mov_b64 exec, -1")
    a.label(f"L_{name}_nosig")
    A("s_memtime s[80:81]")
    A("s_memtime s[82:83]")

def gen_linb(a, name, vr, vG, vRow):
    A = a.emit
    X = 112
    A("s_lshl_b32 s54, s9, 2")
    A("s_add_u32 s54, s54, 64")
    A(f"v_mov_b32 v{X}, s54")
    a.label(f"L_{name}_poll")
    A(f"buffer_load_dword v{X+1}, v{X}, s[64:67], 0 offen sc0 sc1")
    A("s_waitcnt vmcnt(0)")
    A(f"v_readfirstlane_b32 s55, v{X+1}")
    A("s_cmp_ge_u32 s55, 16")
    A(f"s_cbranch_scc1 L_{name}_polled")
    A("s_sleep 8")
    A(f"s_branch L_{name}_poll")
    a.label(f"L_{name}_polled")
    A(f"v_lshlrev_b32 v{X}, 4, v0")
    A("s_lshl_b32 s54, s9, 16")
    A(f"s_add_u32 s54, s54, {KVSUM}")
    for p in range(8):
        A(f"s_add_u32 s55, s54, {p*8192}")
        A(f"buffer_load_dwordx4 {vr(16+4*p,4)}, v{X}, s[4:7], s55 offen sc0 sc1")
    A("s_waitcnt vmcnt(0)")
    for i in range(4):
        for p in range(1, 8):
            A(f"v_add_f32 v{16+i}, v{16+i}, v{16+4*p+i}")
    A(f"ds_write_b128 v{X}, {vr(16,4)} offset:{LDS_KV}")
    A("s_mul_i32 s59, s8, 2560")
    A(f"s_add_u32 s59, s59, {LDS_E}")
    A(f"v_lshlrev_b32 v{X+2}, 2, v1")
    A(f"v_add_u32 v{X+2}, s59, v{X+2}")
    E = 48
    for si in range(2):
        for i in range(5):
            A(f"ds_read_b32 v{E+6*si+i}, v{X+2} offset:{(si*5+i)*256}")
        A(f"v_mov_b32 v{E+6*si+5}, 0")
    A("s_waitcnt lgkmcnt(0)")
    A("s_barrier")
    A(f"v_lshrrev_b32 v{X+3}, 3, v2")
    A(f"v_and_b32 v{X+4}, 3, v2")
    A(f"v_lshl_add_u32 v{X+3}, v{X+3}, 2, v{X+4}")
    A(f"v_lshlrev_b32 v{X+3}, 8, v{X+3}")
    A(f"v_bfe_u32 v{X+4}, v2, 2, 1")
    A(f"v_lshl_add_u32 v{X+3}, v{X+4}, 7, v{X+3}")
    A(f"v_lshl_add_u32 v{X+3}, v3, 4, v{X+3}")
    F = 64
    for si in range(2):
        for aa in range(3):
            A(f"ds_read_b128 {vr(F+(si*3+aa)*4,4)}, v{X+3} offset:{LDS_KV+si*4096+aa*32}")
    A("v_cmp_eq_u32 vcc, 21, v2")
    A("s_waitcnt lgkmcnt(0)")
    for i in range(24):
        A(f"v_cndmask_b32 v{F+i}, v{F+i}, 1.0, vcc")
    AF = 88
    for j in range(6):
        A(f"v_cvt_pk_bf16_f32 v{AF+2*j}, v{F+4*j}, v{F+4*j+1}")
        A(f"v_cvt_pk_bf16_f32 v{AF+2*j+1}, v{F+4*j+2}, v{F+4*j+3}")
    NP, NN = 16, 32
    for si, ACC in enumerate((NP, NN)):
        for aa in range(3):
            c = "0" if aa == 0 else vr(ACC,16)
            A(f"v_mfma_f32_32x32x8bf16_1k {vr(ACC,16)}, {vr(AF+2*(si*3+aa),2)}, {vr(E+6*si+2*aa,2)}, {c}")
    t = X
    for k, src in enumerate((NP+8, NP+9, NN+8, NN+9)):
        A(f"v_mov_b32 v{t+2*k}, v{src}")
        A(f"v_mov_b32 v{t+2*k+1}, v{src}")
        A(f"v_permlane32_swap_b32 v{t+2*k}, v{t+2*k+1}")
    dP, sP, dN, sN = t+1, t+3, t+5, t+7
    A(f"v_rcp_f32 v{sP}, v{sP}")
    A(f"v_rcp_f32 v{sN}, v{sN}")
    A(f"v_mul_f32 v{dP}, v{dP}, v{sP}")
    A(f"v_fma_f32 v{dP}, v{dN}, v{sN}, v{dP}")
    A(f"v_add_f32 v{dP}, 0x358637bd, v{dP}")
    A(f"v_rcp_f32 v{dP}, v{dP}")
    A(f"v_sub_f32 v{dN}, 1.0, v{vG}")
    A(f"v_mul_f32 v{dP}, v{dP}, v{dN}")
    A(f"v_mul_f32 v{sP}, v{sP}, v{dP}")
    A(f"v_mul_f32 v{sN}, v{sN}, v{dP}")
    for r in range(12):
        A(f"v_mul_f32 v{NP+r}, v{NP+r}, v{sP}")
        A(f"v_fma_f32 v{NP+r}, v{NN+r}, v{sN}, v{NP+r}")
    PK = 48
    for i in range(6):
        A(f"v_cvt_pk_bf16_f32 v{PK+i}, v{NP+2*i}, v{NP+2*i+1}")
    T = X + 8
    A(f"v_lshrrev_b32 v{T}, 4, v{vRow}")
    A("s_mov_b32 s27, 40960")
    A(f"v_mul_lo_u32 v{T}, v{T}, s27")
    A(f"v_and_b32 v{T+1}, 15, v{vRow}")
    A(f"v_lshlrev_b32 v{T+1}, 4, v{T+1}")
    A(f"v_add_u32 v{T}, v{T}, v{T+1}")
    A("s_mul_i32 s28, s9, 5")
    A("s_add_u32 s28, s28, 160")
    def qoff(dst, q):
        A(f"s_lshr_b32 {dst}, {q}, 3")
        A(f"s_lshl_b32 {dst}, {dst}, 10")
        A(f"s_and_b32 s33, {q}, 7")
        A(f"s_lshr_b32 s33, s33, 1")
        A(f"s_lshl_b32 s33, s33, 8")
        A(f"s_add_u32 {dst}, {dst}, s33")
        A(f"s_and_b32 s33, {q}, 1")
        A(f"s_lshl_b32 s33, s33, 3")
        A(f"s_add_u32 {dst}, {dst}, s33")
    A(f"s_mov_b32 s34, {OCAT}")
    for aa in range(3):
        A(f"s_add_u32 s29, s28, {2*aa}")
        qoff("s30", "s29")
        A("s_add_u32 s29, s29, 1")
        qoff("s31", "s29")
        A(f"v_mov_b32 v{T+1}, s30")
        A(f"v_mov_b32 v{T+2}, s31")
        A(f"v_cndmask_b32 v{T+1}, v{T+1}, v{T+2}, s[16:17]")
        A(f"v_add_u32 v{T+1}, v{T+1}, v{T}")
        if aa == 2:
            A("s_mov_b32 exec_hi, 0")
        A(f"buffer_store_dwordx2 {vr(PK+2*aa,2)}, v{T+1}, s[4:7], s34 offen")
        if aa == 2:
            A("s_mov_b32 exec_hi, -1")

def gen_k2(name="att_kernel", prof=False, NW=8, exp=""):
    NH = NW // 8
    TPS = STAGE_TILES // NH
    a = Asm()
    A = a.emit
    Q1, Q2 = 4, 8
    O = 16; S = [32, 48]; P = 64
    K1 = [72, 76]; K2 = [80, 82]; V = [84, 92]
    aK1c, aK2c, aVc, aK1n, aK2n, aVn = 100, 101, 102, 103, 104, 105
    lK1, lK2, lV, vDma, vG, vRow = 106, 107, 108, 109, 110, 111
    T = 112
    def vr(b, n): return f"v[{b}:{b+n-1}]"
    a.raw(f".globl {name}\n.p2align 8\n.type {name},@function\n{name}:")
    A("s_load_dwordx2 s[4:5], s[0:1], 80")
    A("s_load_dwordx2 s[44:45], s[0:1], 40")
    if prof:
        A("s_memtime s[40:41]")
        A("s_memrealtime s[48:49]")
    A("v_and_b32 v1, 63, v0")
    A("v_lshrrev_b32 v3, 6, v0")
    A("v_readfirstlane_b32 s8, v3")
    from jobs import emit_jobpick
    emit_jobpick(a, name, 32, LDS_JOB)
    A("s_cmp_ge_u32 s63, 32")
    A(f"s_cbranch_scc1 L_{name}_end")
    A("s_lshl_b32 s9, s62, 2")
    A("s_and_b32 s10, s63, 3")
    A("s_add_u32 s9, s9, s10")
    A("s_lshr_b32 s10, s63, 2")
    A("s_lshl_b32 s53, s62, 5")
    A("s_add_u32 s53, s53, s63")
    A("s_and_b32 s37, s8, 7")
    A("s_lshr_b32 s38, s8, 3")
    A("v_and_b32 v2, 31, v1")
    A("v_lshrrev_b32 v3, 5, v1")
    A("v_cmp_lt_u32 s[16:17], 31, v1")
    A(f"v_lshlrev_b32 v{lK1}, 4, v1")
    A(f"v_lshlrev_b32 v{lK2}, 4, v2")
    A(f"v_lshlrev_b32 v{T}, 3, v3")
    A(f"v_add_u32 v{lK2}, v{lK2}, v{T}")
    A(f"v_add_u32 v{lK2}, 1024, v{lK2}")
    A(f"v_mul_u32_u24 v{T}, 384, v3")
    if True:
        A(f"v_min_u32 v{T+1}, 21, v2")
        A(f"v_lshlrev_b32 v{lV}, 4, v{T+1}")
    else:
        A(f"v_lshlrev_b32 v{lV}, 4, v2")
    A(f"v_add_u32 v{lV}, v{lV}, v{T}")
    A(f"v_add_u32 v{lV}, 1536, v{lV}")
    A("s_waitcnt lgkmcnt(0)")
    A("s_mov_b32 s6, 0x10000000")
    A("s_mov_b32 s7, 0x00020000")
    A(f"s_mul_i32 s11, s9, {64*TILE_B}")
    A(f"s_add_u32 s11, s11, {KVIMG}")
    A("s_mul_i32 s18, s37, 3072")
    A(f"v_add_u32 v{vDma}, s18, v{lK1}")
    A("s_lshl_b32 s19, s10, 3")
    A("s_add_u32 s19, s19, s37")
    A("s_lshl_b32 s20, s9, 6")
    A("s_add_u32 s20, s20, s19")
    A("s_mul_i32 s20, s20, 1536")
    A(f"s_add_u32 s20, s20, {QIMG}")
    A(f"buffer_load_dwordx4 {vr(Q1,4)}, v{lK1}, s[4:7], s20 offen")
    A(f"buffer_load_dwordx2 {vr(Q2,2)}, v{lK2}, s[4:7], s20 offen")
    A("s_lshl_b32 s21, s19, 5")
    A(f"v_add_u32 v{vRow}, s21, v2")
    A(f"v_lshlrev_b32 v{T}, 2, v{vRow}")
    A(f"s_mov_b32 s22, {GATE}")
    A(f"buffer_load_dword v{vG}, v{T}, s[4:7], s22 offen")
    A(f"s_mov_b32 s14, {RING}")
    A(f"s_mov_b32 s15, {RING+STAGE_B}")
    A(f"s_mov_b32 s13, {RING+2*STAGE_B}")
    A(f"s_add_u32 s23, s11, {STAGE_B}")
    if NH == 2:
        A("s_cmp_lg_u32 s38, 0")
        A(f"s_cbranch_scc1 L_{name}_nodma0")
    A("s_add_u32 m0, s14, s18")
    for p in range(3):
        A(f"buffer_load_dwordx4 v{vDma}, s[4:7], s11 offen offset:{p*1024} lds")
    A("s_add_u32 m0, s15, s18")
    for p in range(3):
        A(f"buffer_load_dwordx4 v{vDma}, s[4:7], s23 offen offset:{p*1024} lds")
    if NH == 2:
        a.label(f"L_{name}_nodma0")
    A(f"s_add_u32 s23, s23, {STAGE_B}")
    gen_fm(a, name, vr, lK1, lK2, lV)
    for r in range(16):
        A(f"v_mov_b32 v{O+r}, 0")
    A(f"s_mul_i32 s39, s38, {TPS*TILE_B}")
    A(f"v_add_u32 v{T+2}, s39, v{lK1}")
    A(f"v_add_u32 v{T+3}, s39, v{lK2}")
    A(f"v_add_u32 v{T+4}, s39, v{lV}")
    A(f"v_add_u32 v{aK1c}, s14, v{T+2}")
    A(f"v_add_u32 v{aK2c}, s14, v{T+3}")
    A(f"v_add_u32 v{aVc}, s14, v{T+4}")
    A(f"v_add_u32 v{aK1n}, s15, v{T+2}")
    A(f"v_add_u32 v{aK2n}, s15, v{T+3}")
    A(f"v_add_u32 v{aVn}, s15, v{T+4}")
    hK1, hK2, hV = 117, 118, 119
    T = 120
    A(f"v_mov_b32 v{hK1}, v114")
    A(f"v_mov_b32 v{hK2}, v115")
    A(f"v_mov_b32 v{hV}, v116")
    if NH == 2:
        A("s_waitcnt vmcnt(3)")
        A("s_cmp_eq_u32 s38, 0")
        A(f"s_cbranch_scc1 L_{name}_w0")
        A("s_waitcnt vmcnt(0)")
        a.label(f"L_{name}_w0")
    else:
        A("s_waitcnt vmcnt(3)")
    A(f"v_cndmask_b32 v{Q2}, v{Q2}, 0, s[16:17]")
    A(f"v_cndmask_b32 v{Q2+1}, v{Q2+1}, 0, s[16:17]")
    A("s_barrier")
    A(f"ds_read_b128 {vr(K1[0],4)}, v{aK1c}")
    A(f"ds_read_b64 {vr(K2[0],2)}, v{aK2c}")
    A("s_waitcnt lgkmcnt(0)")
    A(f"v_mfma_f32_32x32x16_bf16 {vr(S[0],16)}, {vr(K1[0],4)}, {vr(Q1,4)}, 0")
    A(f"v_mfma_f32_32x32x8bf16_1k {vr(S[0],16)}, {vr(K2[0],2)}, {vr(Q2,2)}, {vr(S[0],16)}")
    A(f"ds_read_b128 {vr(K1[0],4)}, v{aK1c}")
    A(f"ds_read_b64 {vr(K2[0],2)}, v{aK2c}")
    A(f"ds_read_b128 {vr(K1[1],4)}, v{aK1c} offset:{TILE_B}")
    A(f"ds_read_b64 {vr(K2[1],2)}, v{aK2c} offset:{TILE_B}")
    A(f"ds_read_b128 {vr(V[0],4)}, v{aVc}")
    A(f"ds_read_b128 {vr(V[0]+4,4)}, v{aVc} offset:768")
    def setmax(Sb):
        A(f"v_max3_f32 v{T}, v{Sb}, v{Sb+1}, v{Sb+2}")
        for r in range(3, 15, 2):
            A(f"v_max3_f32 v{T}, v{T}, v{Sb+r}, v{Sb+r+1}")
        A(f"v_max_f32 v{T}, v{T}, v{Sb+15}")
        setmax_from(T)
    def setmax_from(t):
        A(f"v_mov_b32 v{T+1}, v{t}")
        A(f"v_permlane32_swap_b32 v{t}, v{T+1}")
        A(f"v_max_f32 v{t}, v{t}, v{T+1}")
        A(f"v_sub_f32 v{t}, 0, v{t}")
        A(f"v_cvt_pk_bf16_f32 v{t}, v{t}, 0")
        A(f"v_cndmask_b32 v{Q2}, v{Q2}, v{t}, s[16:17]")
    setmax(S[0])
    A("s_waitcnt lgkmcnt(0)")
    A(f"v_mfma_f32_32x32x16_bf16 {vr(S[0],16)}, {vr(K1[0],4)}, {vr(Q1,4)}, 0")
    A(f"v_mfma_f32_32x32x8bf16_1k {vr(S[0],16)}, {vr(K2[0],2)}, {vr(Q2,2)}, {vr(S[0],16)}")
    for i in range(4):
        A(f"v_mov_b32 v{P+4+i}, 0")
        A(f"v_mov_b32 v{V[1]+4+i}, 0")
    A(f"v_mov_b32 v{S[1]+14}, 0")
    A(f"v_mov_b32 v{S[1]+15}, 0")
    A("s_mov_b32 s12, 0")
    if prof:
        A("s_memtime s[42:43]")
    def body(s):
        E = s.emit
        for j in range(TPS):
            p = j & 1; n = 1 - p
            E("s_waitcnt lgkmcnt(0)")
            if j == TPS - 2 and 'nobar' not in exp:
                E(f"s_cmp_eq_u32 s12, {NSTAGE-1}")
                E(f"s_cbranch_scc1 L_{name}_nobar")
                E("s_waitcnt vmcnt(0)")
                E("s_barrier")
                E(f"s_cmp_ge_u32 s12, {NSTAGE-2}")
                E(f"s_cbranch_scc1 L_{name}_nobar")
                if NH == 2:
                    E("s_cmp_lg_u32 s38, 0")
                    E(f"s_cbranch_scc1 L_{name}_nobar")
                E("s_add_u32 m0, s13, s18")
                for pp in range(3):
                    E(f"buffer_load_dwordx4 v{vDma}, s[4:7], s23 offen offset:{pp*1024} lds")
                E(f"s_add_u32 s23, s23, {STAGE_B}")
                s.label(f"L_{name}_nobar")
            jk = j + 2; jv = j + 1
            ak1, ak2 = (aK1c, aK2c) if jk < TPS else (aK1n, aK2n)
            av = aVc if jv < TPS else aVn
            E(f"ds_read_b128 {vr(K1[p],4)}, v{ak1} offset:{(jk%TPS)*TILE_B}")
            E(f"ds_read_b64 {vr(K2[p],2)}, v{ak2} offset:{(jk%TPS)*TILE_B}")
            E(f"ds_read_b128 {vr(V[n],4)}, v{av} offset:{(jv%TPS)*TILE_B}")
            Sb = S[p]; Sp = S[n]
            def ex(r): E(f"v_exp_f32 v{Sb+r}, v{Sb+r}")
            def cv(i): E(f"v_cvt_pk_bf16_f32 v{P+i}, v{Sb+2*i}, v{Sb+2*i+1}")
            E(f"v_cvt_pk_bf16_f32 v{P+7}, v{Sp+14}, v{Sp+15}")
            E(f"v_mfma_f32_32x32x16_bf16 {vr(S[n],16)}, {vr(K1[n],4)}, {vr(Q1,4)}, 0")
            ex(0); ex(1); ex(2); cv(0); ex(3)
            E(f"v_mfma_f32_32x32x16_bf16 {vr(O,16)}, {vr(V[n]+4,4)}, {vr(P+4,4)}, {vr(O,16)}")
            E(f"ds_read_b128 {vr(V[n]+4,4)}, v{av} offset:{(jv%TPS)*TILE_B+768}")
            ex(4); cv(1); ex(5); ex(6); cv(2); ex(7)
            E(f"v_mfma_f32_32x32x8bf16_1k {vr(S[n],16)}, {vr(K2[n],2)}, {vr(Q2,2)}, {vr(S[n],16)}")
            ex(8); cv(3); ex(9); ex(10); cv(4); ex(11)
            E(f"v_mfma_f32_32x32x16_bf16 {vr(O,16)}, {vr(V[p],4)}, {vr(P,4)}, {vr(O,16)}")
            ex(12); cv(5); ex(13); ex(14); cv(6); ex(15)
        E("s_mov_b32 s24, s13")
        E("s_mov_b32 s13, s14")
        E("s_mov_b32 s14, s15")
        E("s_mov_b32 s15, s24")
        E(f"v_mov_b32 v{aK1c}, v{aK1n}")
        E(f"v_mov_b32 v{aK2c}, v{aK2n}")
        E(f"v_mov_b32 v{aVc}, v{aVn}")
        E(f"v_add_u32 v{aK1n}, s15, v{hK1}")
        E(f"v_add_u32 v{aK2n}, s15, v{hK2}")
        E(f"v_add_u32 v{aVn}, s15, v{hV}")
        if prof and 'stamps' in exp:
            E("s_memtime s[54:55]")
            E("s_memrealtime s[56:57]")
            E("s_waitcnt lgkmcnt(0)")
            E("v_mov_b32 v120, s54")
            E("v_mov_b32 v121, s56")
            E("s_lshl_b32 s58, s2, 3")
            E("s_add_u32 s58, s58, s37")
            E("s_lshl_b32 s58, s58, 7")
            E("s_lshl_b32 s59, s12, 3")
            E("s_add_u32 s58, s58, s59")
            E("s_add_u32 s58, s58, 0x9000000")
            E("v_mov_b32 v122, 0")
            E("s_mov_b64 s[60:61], exec")
            E("s_mov_b64 exec, 1")
            E("buffer_store_dwordx2 v[120:121], v122, s[4:7], s58 offen")
            E("s_mov_b64 exec, s[60:61]")
        E("s_add_u32 s12, s12, 1")
    def tail(s):
        s.emit(f"s_cmp_lt_u32 s12, {NSTAGE}")
        s.emit(f"s_cbranch_scc1 L_{name}_loop")
    a.loop(f"L_{name}_loop", body, tail)
    A(f"v_cvt_pk_bf16_f32 v{P+7}, v{S[1]+14}, v{S[1]+15}")
    A(f"v_mfma_f32_32x32x16_bf16 {vr(O,16)}, {vr(V[1]+4,4)}, {vr(P+4,4)}, {vr(O,16)}")
    A("s_waitcnt lgkmcnt(0)")
    if prof:
        A("s_memtime s[44:45]")
        A("s_waitcnt lgkmcnt(0)")
    if NH == 2:
        a.fence()
        A("s_barrier")
        A(f"s_mul_i32 s39, s37, {12*256}")
        A(f"v_lshlrev_b32 v{T}, 2, v1")
        A(f"v_add_u32 v{T}, s39, v{T}")
        A("s_cmp_eq_u32 s38, 0")
        A(f"s_cbranch_scc1 L_{name}_cmb0")
        for r in range(12):
            A(f"ds_write_b32 v{T}, v{O+r} offset:{r*256}")
        A("s_waitcnt lgkmcnt(0)")
        A("s_barrier")
        A(f"s_branch L_{name}_end")
        a.label(f"L_{name}_cmb0")
        A("s_barrier")
        for r in range(12):
            A(f"ds_read_b32 v{S[0]+r}, v{T} offset:{r*256}")
        A("s_waitcnt lgkmcnt(0)")
        for r in range(12):
            A(f"v_add_f32 v{O+r}, v{O+r}, v{S[0]+r}")
    A("s_mov_b32 s25, 0")
    a.label(f"L_{name}_epi")
    a.fence()
    A(f"v_add_f32 v{T}, |v{O}|, |v{O+1}|")
    for r in range(2, 9):
        A(f"v_add_f32 v{T}, v{T}, |v{O+r}|")
    A(f"v_add_f32 v{T+1}, |v{O+9}|, |v{O+10}|")
    A(f"v_add_f32 v{T+1}, v{T+1}, |v{O+11}|")
    A(f"v_cndmask_b32 v{T+1}, v{T+1}, 0, s[16:17]")
    A(f"v_add_f32 v{T}, v{T}, v{T+1}")
    A("s_mov_b32 s26, 0x7f000000")
    A(f"v_cmp_nle_f32 vcc, v{T}, s26")
    A("s_cmp_lg_u32 s25, 0")
    A(f"s_cbranch_scc1 L_{name}_store")
    A(f"s_cbranch_vccnz L_{name}_fallback")
    a.label(f"L_{name}_store")
    a.fence()
    A(f"v_mov_b32 v{T}, v{O+8}")
    A(f"v_mov_b32 v{T+1}, v{O+8}")
    A(f"v_permlane32_swap_b32 v{T}, v{T+1}")
    A(f"v_rcp_f32 v{T+1}, v{T+1}")
    A(f"v_mul_f32 v{T+1}, v{T+1}, v{vG}")
    for r in range(12):
        A(f"v_mul_f32 v{O+r}, v{O+r}, v{T+1}")
    PK = S[0]
    for i in range(6):
        A(f"v_cvt_pk_bf16_f32 v{PK+i}, v{O+2*i}, v{O+2*i+1}")
    A(f"v_lshrrev_b32 v{T}, 4, v{vRow}")
    A("s_mov_b32 s27, 40960")
    A(f"v_mul_lo_u32 v{T}, v{T}, s27")
    A(f"v_and_b32 v{T+1}, 15, v{vRow}")
    A(f"v_lshlrev_b32 v{T+1}, 4, v{T+1}")
    A(f"v_add_u32 v{T}, v{T}, v{T+1}")
    A("s_mul_i32 s28, s9, 5")
    def qoff(dst, q):
        A(f"s_lshr_b32 {dst}, {q}, 3")
        A(f"s_lshl_b32 {dst}, {dst}, 10")
        A(f"s_and_b32 s33, {q}, 7")
        A(f"s_lshr_b32 s33, s33, 1")
        A(f"s_lshl_b32 s33, s33, 8")
        A(f"s_add_u32 {dst}, {dst}, s33")
        A(f"s_and_b32 s33, {q}, 1")
        A(f"s_lshl_b32 s33, s33, 3")
        A(f"s_add_u32 {dst}, {dst}, s33")
    A(f"s_mov_b32 s34, {OCAT}")
    for aa in range(3):
        A(f"s_add_u32 s29, s28, {2*aa}")
        qoff("s30", "s29")
        A("s_add_u32 s29, s29, 1")
        qoff("s31", "s29")
        A(f"v_mov_b32 v{T+1}, s30")
        A(f"v_mov_b32 v{T+2}, s31")
        A(f"v_cndmask_b32 v{T+1}, v{T+1}, v{T+2}, s[16:17]")
        A(f"v_add_u32 v{T+1}, v{T+1}, v{T}")
        if aa == 2:
            A("s_mov_b32 exec_hi, 0")
        A(f"buffer_store_dwordx2 {vr(PK+2*aa,2)}, v{T+1}, s[4:7], s34 offen")
        if aa == 2:
            A("s_mov_b32 exec_hi, -1")
    gen_linb(a, name, vr, vG, vRow)
    if prof:
        A("s_memtime s[46:47]")
        A("s_memrealtime s[50:51]")
        A("s_waitcnt lgkmcnt(0)")
        for i, r in enumerate((40, 42, 44, 46, 48, 50)):
            A(f"v_mov_b32 v{T+i}, s{r}")
        A("s_lshl_b32 s52, s53, 3")
        A("s_add_u32 s52, s52, s37")
        A("s_lshl_b32 s52, s52, 5")
        A("s_add_u32 s52, s52, 0x8000000")
        A(f"v_mov_b32 v{T+6}, 0")
        A("s_mov_b32 exec_hi, 0")
        A("s_mov_b32 exec_lo, 1")
        A(f"buffer_store_dwordx4 {vr(T,4)}, v{T+6}, s[4:7], s52 offen")
        A(f"buffer_store_dwordx2 {vr(T+4,2)}, v{T+6}, s[4:7], s52 offen offset:16")
        for i in range(6):
            A(f"v_mov_b32 v{16+i}, s{72+2*i}")
        A("s_add_u32 s52, s52, 0x100000")
        A(f"buffer_store_dwordx4 v[16:19], v{T+6}, s[4:7], s52 offen")
        A(f"buffer_store_dwordx2 v[20:21], v{T+6}, s[4:7], s52 offen offset:16")
    A(f"s_branch L_{name}_end")
    a.label(f"L_{name}_fallback")
    a.fence()
    A("s_mov_b32 s25, 1")
    A(f"v_cndmask_b32 v{Q2}, v{Q2}, 0, s[16:17]")
    A(f"v_mov_b32 v{T+4}, 0xff800000")
    A("s_mov_b32 s35, s11")
    A("s_mov_b32 s36, 0")
    a.label(f"L_{name}_fb1")
    a.fence()
    A(f"buffer_load_dwordx4 {vr(K1[0],4)}, v{lK1}, s[4:7], s35 offen")
    A(f"buffer_load_dwordx2 {vr(K2[0],2)}, v{lK2}, s[4:7], s35 offen")
    A("s_waitcnt vmcnt(0)")
    A(f"v_mfma_f32_32x32x16_bf16 {vr(S[0],16)}, {vr(K1[0],4)}, {vr(Q1,4)}, 0")
    A(f"v_mfma_f32_32x32x8bf16_1k {vr(S[0],16)}, {vr(K2[0],2)}, {vr(Q2,2)}, {vr(S[0],16)}")
    for r in range(0, 16, 2):
        A(f"v_max3_f32 v{T+4}, v{T+4}, v{S[0]+r}, v{S[0]+r+1}")
    A(f"s_add_u32 s35, s35, {TILE_B}")
    A("s_add_u32 s36, s36, 1")
    A("s_cmp_lt_u32 s36, 64")
    A(f"s_cbranch_scc1 L_{name}_fb1")
    a.fence()
    setmax_from(T+4)
    for r in range(16):
        A(f"v_mov_b32 v{O+r}, 0")
    A("s_mov_b32 s35, s11")
    A("s_mov_b32 s36, 0")
    a.label(f"L_{name}_fb2")
    a.fence()
    A(f"buffer_load_dwordx4 {vr(K1[0],4)}, v{lK1}, s[4:7], s35 offen")
    A(f"buffer_load_dwordx2 {vr(K2[0],2)}, v{lK2}, s[4:7], s35 offen")
    A(f"buffer_load_dwordx4 {vr(V[0],4)}, v{lV}, s[4:7], s35 offen")
    A(f"buffer_load_dwordx4 {vr(V[0]+4,4)}, v{lV}, s[4:7], s35 offen offset:768")
    A("s_waitcnt vmcnt(0)")
    A(f"v_mfma_f32_32x32x16_bf16 {vr(S[0],16)}, {vr(K1[0],4)}, {vr(Q1,4)}, 0")
    A(f"v_mfma_f32_32x32x8bf16_1k {vr(S[0],16)}, {vr(K2[0],2)}, {vr(Q2,2)}, {vr(S[0],16)}")
    for r in range(16):
        A(f"v_exp_f32 v{S[0]+r}, v{S[0]+r}")
    for i in range(8):
        A(f"v_cvt_pk_bf16_f32 v{P+i}, v{S[0]+2*i}, v{S[0]+2*i+1}")
    A(f"v_mfma_f32_32x32x16_bf16 {vr(O,16)}, {vr(V[0],4)}, {vr(P,4)}, {vr(O,16)}")
    A(f"v_mfma_f32_32x32x16_bf16 {vr(O,16)}, {vr(V[0]+4,4)}, {vr(P+4,4)}, {vr(O,16)}")
    A(f"s_add_u32 s35, s35, {TILE_B}")
    A("s_add_u32 s36, s36, 1")
    A("s_cmp_lt_u32 s36, 64")
    A(f"s_cbranch_scc1 L_{name}_fb2")
    A(f"s_branch L_{name}_epi")
    a.label(f"L_{name}_end")
    A("s_endpgm")
    desc = f""".section .rodata,"a"
.p2align 6
.amdhsa_kernel {name}
  .amdhsa_next_free_vgpr 128
  .amdhsa_next_free_sgpr 96
  .amdhsa_accum_offset 128
  .amdhsa_group_segment_fixed_size 0
  .amdhsa_kernarg_size 88
  .amdhsa_user_sgpr_count 2
  .amdhsa_user_sgpr_kernarg_segment_ptr 1
  .amdhsa_system_sgpr_workgroup_id_x 1
.end_amdhsa_kernel
.text
"""
    return a.text(), desc, a.nops

if __name__ == "__main__":
    t, d, n = gen_k2()
    print(t)
    print("; nops", n)
```

```python
from dsl import Asm
from layout import *

def gen_k3(name="out_kernel"):
    a = Asm(); A = a.emit
    def vr(b, n): return f"v[{b}:{b+n-1}]"
    a.raw(f".globl {name}\n.p2align 8\n.type {name},@function\n{name}:")
    A("s_load_dwordx2 s[4:5], s[0:1], 80")
    A("s_load_dwordx2 s[12:13], s[0:1], 64")
    A("v_and_b32 v1, 63, v0")
    A("v_lshrrev_b32 v3, 6, v0")
    A("v_readfirstlane_b32 s8, v3")
    from jobs import emit_jobpick
    emit_jobpick(a, name, 32, 143360)
    A("s_cmp_ge_u32 s63, 32")
    A(f"s_cbranch_scc1 L_{name}_end")
    A("s_lshl_b32 s9, s62, 2")
    A("s_lshr_b32 s10, s63, 3")
    A("s_add_u32 s9, s9, s10")
    A("s_and_b32 s10, s63, 7")
    A("s_mov_b32 s6, 0x10000000")
    A("s_mov_b32 s7, 0x00020000")
    A(f"s_mov_b32 s14, {2048*1280}")
    A("s_mov_b32 s15, 0x00020000")
    A("v_lshlrev_b32 v2, 4, v1")
    A("s_mul_i32 s16, s9, 163840")
    A("s_mul_i32 s17, s8, 5120")
    A("s_add_u32 s16, s16, s17")
    A(f"s_add_u32 s16, s16, {OCAT}")
    A("s_mul_i32 s18, s10, 204800")
    A("s_add_u32 s18, s18, s17")
    A(f"s_add_u32 s18, s18, {WOT}")
    FA = 96; FB = 176
    ACC = 16
    def fa(ks, rt): return 96 + (ks % 4) * 36 + rt * 4
    def fb(ks, nt): return 96 + (ks % 4) * 36 + 16 + nt * 4
    def loads(ks):
        for rt in range(4):
            A(f"s_add_u32 s20, s16, {rt*40960 + ks*1024}")
            A(f"buffer_load_dwordx4 {vr(fa(ks,rt),4)}, v2, s[4:7], s20 offen")
        for nt in range(5):
            A(f"s_add_u32 s20, s18, {nt*40960 + ks*1024}")
            A(f"buffer_load_dwordx4 {vr(fb(ks,nt),4)}, v2, s[4:7], s20 offen")
    for ks in range(4): loads(ks)
    def mm(ks):
        for rt in range(4):
            for nt in range(5):
                acc = vr(ACC + (rt*5+nt)*4, 4)
                c = "0" if ks == 0 else acc
                A(f"v_mfma_f32_16x16x32_bf16 {acc}, {vr(fb(ks,nt),4)}, {vr(fa(ks,rt),4)}, {c}")
    A("s_waitcnt vmcnt(27)")
    mm(0)
    loads(4)
    A("s_waitcnt vmcnt(27)")
    mm(1)
    A("s_waitcnt vmcnt(18)")
    mm(2)
    A("s_waitcnt vmcnt(9)")
    mm(3)
    A("s_waitcnt vmcnt(0)")
    mm(4)
    a.fence()
    A("s_mov_b32 s21, 0")
    for t in range(20):
        own = t % 8
        A(f"s_cmp_eq_u32 s8, {own}")
        A(f"s_cbranch_scc1 L_{name}_skipw{t}")
        A(f"s_cmp_gt_u32 s8, {own}")
        A("s_cselect_b32 s22, 1, 0")
        A("s_sub_u32 s22, s8, s22")
        A("s_lshl_b32 s22, s22, 10")
        A(f"v_add_u32 v4, s22, v2")
        A(f"ds_write_b128 v4, {vr(ACC+4*t,4)} offset:{(t*7168) % 65536}" if t*7168 < 65536 - 1024*7 else f"v_add_u32 v4, {t*7168}, v4\n ds_write_b128 v4, {vr(ACC+4*t,4)}")
        a.label(f"L_{name}_skipw{t}")
    A("s_waitcnt lgkmcnt(0)")
    A("s_barrier")
    A("s_mul_i32 s22, s8, 7168")
    A("v_add_u32 v4, s22, v2")
    for i in range(3):
        if i == 2:
            A("s_cmp_ge_u32 s8, 4")
            A(f"s_cbranch_scc1 L_{name}_end")
        if i > 0:
            A(f"v_add_u32 v4, {8*7168}, v4")
        for sidx in range(7):
            A(f"ds_read_b128 {vr(96+4*sidx,4)}, v4 offset:{sidx*1024}")
        for w in range(8):
            t = w + 8*i
            if t >= 20: continue
            A(f"s_cmp_lg_u32 s8, {w}")
            A(f"s_cbranch_scc1 L_{name}_sel{i}_{w}")
            for r in range(4):
                A(f"v_mov_b32 v{128+r}, v{ACC+4*t+r}")
            a.label(f"L_{name}_sel{i}_{w}")
        A("s_waitcnt lgkmcnt(0)")
        for sidx in range(7):
            for r in range(4):
                A(f"v_add_f32 v{128+r}, v{128+r}, v{96+4*sidx+r}")
        A("v_cvt_pk_bf16_f32 v132, v128, v129")
        A("v_cvt_pk_bf16_f32 v133, v130, v131")
        A(f"s_add_u32 s23, s8, {8*i}")
        A("s_mul_i32 s24, s23, 52")
        A("s_lshr_b32 s24, s24, 8")
        A("s_mul_i32 s25, s24, 5")
        A("s_sub_u32 s25, s23, s25")
        A("s_lshl_b32 s26, s9, 6")
        A("s_lshl_b32 s24, s24, 4")
        A("s_add_u32 s26, s26, s24")
        A("s_mul_i32 s26, s26, 1280")
        A("s_mul_i32 s27, s10, 160")
        A("s_lshl_b32 s25, s25, 5")
        A("s_add_u32 s26, s26, s27")
        A("s_add_u32 s26, s26, s25")
        A("v_and_b32 v5, 15, v1")
        A("v_mul_u32_u24 v5, 1280, v5")
        A("v_lshrrev_b32 v6, 4, v1")
        A("v_lshl_add_u32 v5, v6, 3, v5")
        A("buffer_store_dwordx2 v[132:133], v5, s[12:15], s26 offen")
        a.fence()
    a.label(f"L_{name}_end")
    A("s_endpgm")
    desc = f""".section .rodata,"a"
.p2align 6
.amdhsa_kernel {name}
  .amdhsa_next_free_vgpr 240
  .amdhsa_next_free_sgpr 96
  .amdhsa_accum_offset 240
  .amdhsa_group_segment_fixed_size 0
  .amdhsa_kernarg_size 88
  .amdhsa_user_sgpr_count 2
  .amdhsa_user_sgpr_kernarg_segment_ptr 1
  .amdhsa_system_sgpr_workgroup_id_x 1
.end_amdhsa_kernel
.text
"""
    return a.text(), desc, a.nops
```

```python
QIMG   = 0x0000000
KVIMG  = 0x0300000
GATE   = 0x0900000
OCAT   = 0x0A00000
QIMGB  = 0x1000000
KVIMGB = 0x1300000
KVSUM  = 0x1900000
WOT    = 0x1C00000
WS_BYTES = 268435456
NAME = "gated_mix__softmax_full_mha__linear_kernel_hedgehog__prompt"
```

```python
import sys
from k1 import gen_k1_full
from k2 import gen_k2, LDS_TOTAL
from k3 import gen_k3
from build import build
prof = len(sys.argv) > 2
t1, d1, _ = gen_k1_full("proj_kernel")
t2, d2, _ = gen_k2("att_kernel", prof=prof, NW=8)
t3, d3, _ = gen_k3("out_kernel")
build([(t1, d1), (t2, d2), (t3, d3)],
      [("proj_kernel", 256, 512, 6*24576+64), ("att_kernel", 256, 512, LDS_TOTAL), ("out_kernel", 256, 512, 143360+64)],
      sys.argv[1])
```

```python
STATIC = True
def emit_jobpick(a, name, njobs, lds_off, swave="s8", sx="s62", sj="s63"):
    A = a.emit
    if STATIC:
        A("s_load_dwordx2 s[64:65], s[0:1], 72")
        A("s_mov_b32 s66, 256")
        A("s_mov_b32 s67, 0x00020000")
        A(f"s_and_b32 {sx}, s2, 7")
        A(f"s_lshr_b32 {sj}, s2, 3")
        A("s_waitcnt lgkmcnt(0)")
        return
    A("s_load_dwordx2 s[64:65], s[0:1], 72")
    A("s_getreg_b32 s68, hwreg(HW_REG_XCC_ID, 0, 4)")
    A("s_and_b32 s68, s68, 7")
    A(f"v_mov_b32 v4, {lds_off}")
    A("s_waitcnt lgkmcnt(0)")
    A("s_mov_b32 s66, 256")
    A("s_mov_b32 s67, 0x00020000")
    A(f"s_cmp_lg_u32 {swave}, 0")
    A(f"s_cbranch_scc1 L_{name}_jp_wait")
    A("s_mov_b32 s69, 0")
    A("s_mov_b64 exec, 1")
    a.label(f"L_{name}_jp_loop")
    A("s_add_u32 s70, s68, s69")
    A("s_and_b32 s70, s70, 7")
    A("s_lshl_b32 s71, s70, 2")
    A("v_mov_b32 v2, s71")
    A("v_mov_b32 v3, 1")
    A("buffer_atomic_add v3, v2, s[64:67], 0 offen sc0 sc1")
    A("s_waitcnt vmcnt(0)")
    A("v_readfirstlane_b32 s71, v3")
    A(f"s_cmp_lt_u32 s71, {njobs}")
    A(f"s_cbranch_scc1 L_{name}_jp_found")
    A("s_add_u32 s69, s69, 1")
    A("s_cmp_lt_u32 s69, 8")
    A(f"s_cbranch_scc1 L_{name}_jp_loop")
    A("s_mov_b32 s71, 0xffff")
    a.label(f"L_{name}_jp_found")
    A("s_lshl_b32 s70, s70, 16")
    A("s_or_b32 s70, s70, s71")
    A("v_mov_b32 v2, s70")
    A("ds_write_b32 v4, v2")
    A("s_mov_b64 exec, -1")
    A("s_waitcnt lgkmcnt(0)")
    a.label(f"L_{name}_jp_wait")
    A("s_barrier")
    A("ds_read_b32 v2, v4")
    A("s_waitcnt lgkmcnt(0)")
    A(f"v_readfirstlane_b32 {sx}, v2")
    A(f"s_and_b32 {sj}, {sx}, 0xffff")
    A(f"s_lshr_b32 {sx}, {sx}, 16")
```

```python
import re

TRANS = ("v_exp_f32", "v_log_f32", "v_rcp_f32", "v_rsq_f32", "v_sqrt_f32", "v_sin_f32", "v_cos_f32",
         "v_exp_f16", "v_log_f16", "v_rcp_f16", "v_rcp_iflag_f32")

def expand(tok):
    tok = tok.strip()
    neg = tok.lstrip('-')
    m = re.fullmatch(r"(?:abs\()?\|?([vsa])\[(\d+):(\d+)\]\|?\)?", neg)
    if m:
        return [f"{m.group(1)}{i}" for i in range(int(m.group(2)), int(m.group(3)) + 1)]
    m = re.fullmatch(r"(?:abs\()?\|?([vsa])(\d+)\|?\)?", neg)
    if m:
        return [f"{m.group(1)}{m.group(2)}"]
    if neg in ("vcc", "exec", "m0", "scc"):
        return [neg]
    if neg in ("vcc_lo", "vcc_hi"): return ["vcc"]
    if neg in ("exec_lo", "exec_hi"): return ["exec"]
    return []

class Ins:
    __slots__ = ("text", "op", "kind", "wr", "rd", "pos", "passes", "srcC", "srcAB", "trans", "dpp", "wide")

def mfma_passes(op):
    if "32x32" in op: return 8
    if "16x16" in op: return 4
    raise ValueError(op)

def parse(text):
    t = text.split(";")[0].strip()
    i = Ins(); i.text = text; i.srcC = []; i.srcAB = []; i.passes = 0; i.trans = False; i.dpp = False; i.wide = False
    parts = t.split(None, 1)
    op = parts[0]; i.op = op
    rest = parts[1] if len(parts) > 1 else ""
    ops = [o.strip() for o in re.split(r",(?![^\[]*\])", rest)] if rest else []
    mods = ""
    if ops:
        l = ops[-1].split()
        if l:
            ops[-1] = l[0]; mods = " ".join(l[1:])
    i.wr = []; i.rd = []
    if op.startswith("v_mfma"):
        i.kind = "mfma"; i.passes = mfma_passes(op)
        i.wr = expand(ops[0]); i.srcAB = expand(ops[1]) + expand(ops[2]); i.srcC = expand(ops[3])
        i.rd = i.srcAB + i.srcC
    elif op.startswith("v_"):
        i.kind = "valu"
        base = op.replace("_e32", "").replace("_e64", "")
        i.trans = base in TRANS
        i.dpp = ("dpp" in op) or ("row_" in mods) or ("quad_perm" in mods)
        if base.startswith("v_cmp"):
            i.wr = expand(ops[0]); i.rd = sum((expand(o) for o in ops[1:]), [])
            if base.startswith("v_cmpx"): i.wr += ["exec"]
        elif base.startswith("v_permlane") and "swap" in base:
            i.wr = expand(ops[0]) + expand(ops[1]); i.rd = list(i.wr); i.kind = "permlane"
        elif base in ("v_readfirstlane_b32", "v_readlane_b32"):
            i.wr = expand(ops[0]); i.rd = sum((expand(o) for o in ops[1:]), []); i.kind = "readlane"
        elif base in ("v_add_co_u32", "v_sub_co_u32", "v_addc_co_u32", "v_subb_co_u32", "v_subrev_co_u32"):
            i.wr = expand(ops[0]) + expand(ops[1]); i.rd = sum((expand(o) for o in ops[2:]), [])
        elif base in ("v_fmac_f32", "v_pk_fmac_f16", "v_dot2c_f32_bf16"):
            i.wr = expand(ops[0]); i.rd = sum((expand(o) for o in ops), [])
        elif base == "v_cndmask_b32" and len(ops) == 3:
            i.wr = expand(ops[0]); i.rd = expand(ops[1]) + expand(ops[2]) + ["vcc"]
        else:
            i.wr = expand(ops[0]); i.rd = sum((expand(o) for o in ops[1:]), [])
            if "UNUSED_PRESERVE" in mods or "op_sel" in mods:
                i.rd += i.wr
    elif op.startswith("buffer_") or op.startswith("global_") or op.startswith("ds_"):
        i.kind = "ds" if op.startswith("ds_") else "vmem"
        isld = ("load" in op or "read" in op or "bpermute" in op or "swizzle" in op or "permute" in op)
        lds = (" lds" in (" " + mods + " ")) or ("_lds_" in op)
        if isld and not lds:
            i.wr = expand(ops[0]); i.rd = sum((expand(o) for o in ops[1:]), [])
            if "d16" in op: i.rd += i.wr
        else:
            i.rd = sum((expand(o) for o in ops), [])
            if lds: i.rd += ["m0"]; i.kind = "dma"
            if "atomic" in op and "sc0" in mods: i.wr = expand(ops[0])
            if ("x4" in op or "x3" in op or "b128" in op or "b96" in op) and not lds and not isld and i.kind == "vmem":
                i.wide = True
    elif op.startswith("s_"):
        i.kind = "salu"
        if op.startswith("s_cmp") or op.startswith("s_bitcmp"):
            i.rd = sum((expand(o) for o in ops), []); i.wr = ["scc"]
        elif op in ("s_waitcnt", "s_barrier", "s_nop", "s_endpgm", "s_branch", "s_setprio", "s_sleep") or op.startswith("s_cbranch"):
            pass
        else:
            i.wr = expand(ops[0]) if ops else []; i.rd = sum((expand(o) for o in ops[1:]), [])
            if "saveexec" in op: i.wr += ["exec"]; i.rd += ["exec"]
    else:
        raise ValueError("unknown op: " + text)
    return i

def overlap(a, b):
    return bool(set(a) & set(b))

class Asm:
    def __init__(self, hist=None, pos=0):
        self.lines = []
        self.hist = list(hist) if hist else []
        self.pos = pos
        self.nops = 0

    def raw(self, text):
        self.lines.append(text)

    def label(self, name):
        self.lines.append(name + ":")

    def need(self, i):
        req = 0
        for p in self.hist:
            d = self.pos - p.pos - 1
            n = 0
            vwr = [r for r in p.wr if r[0] in "va" and r not in ("vcc",)]
            swr = [r for r in p.wr if r[0] == "s" or r in ("vcc",)]
            if p.kind in ("valu", "permlane", "readlane"):
                if i.kind == "mfma" and overlap(vwr, i.rd): n = max(n, 2)
                if i.kind == "permlane" and overlap(vwr, i.rd): n = max(n, 2)
                if i.kind == "readlane" and overlap(vwr, i.rd): n = max(n, 1)
                if i.dpp and overlap(vwr, i.rd): n = max(n, 2)
                if p.trans and i.kind in ("valu", "permlane", "readlane") and not i.trans and overlap(vwr, i.rd + i.wr): n = max(n, 1)
                if p.trans and i.kind in ("vmem", "ds", "dma") and overlap(vwr, i.rd): n = max(n, 1)
                if swr:
                    if i.kind in ("valu", "permlane", "readlane") and overlap(swr, i.rd): n = max(n, 2)
                    if i.kind == "readlane" and overlap(swr, i.rd): n = max(n, 4)
                    if i.kind in ("vmem", "dma", "ds") and overlap(swr, i.rd): n = max(n, 5)
                    if i.kind == "salu" and overlap(swr, i.rd): n = max(n, 2)
                if "exec" in p.wr and i.kind == "mfma": n = max(n, 4)
                if "exec" in p.wr and i.kind in ("readlane", "permlane"): n = max(n, 4)
                if "exec" in p.wr and i.dpp: n = max(n, 5)
            if p.kind == "mfma":
                big = {4: 8, 8: 12}[p.passes]
                if i.kind == "mfma":
                    if overlap(p.wr, i.srcAB): n = max(n, big)
                    if overlap(p.wr, i.srcC):
                        if not (p.wr == i.srcC and p.passes == i.passes):
                            n = max(n, {4: 6, 8: 10}[p.passes])
                    elif overlap(p.wr, i.wr):
                        n = max(n, big)
                elif i.kind in ("valu", "permlane", "readlane"):
                    if overlap(p.wr, i.rd + i.wr): n = max(n, big)
                    if overlap(p.srcC, i.wr): n = max(n, {4: 3, 8: 7}[p.passes])
                elif i.kind in ("vmem", "ds", "dma"):
                    if overlap(p.wr, i.rd + i.wr): n = max(n, big)
            if p.kind == "salu" and "m0" in p.wr and i.kind == "dma": n = max(n, 1)
            if p.kind == "salu" and "exec" in p.wr and i.kind == "mfma": n = max(n, 1)
            if p.wide and overlap(p.rd, i.wr):
                n = max(n, 2)
            req = max(req, n - d)
        return req

    def emit(self, text):
        for line in text.split("\n"):
            line = line.strip()
            if not line or line.startswith(";"):
                continue
            i = parse(line)
            r = self.need(i)
            while r > 0:
                k = min(r, 16)
                self.lines.append(f"  s_nop {k-1}")
                self.pos += k; r -= k; self.nops += 1
            i.pos = self.pos
            if i.op == "s_nop":
                self.pos += int(line.split()[1].split(";")[0]) + 1
            else:
                self.pos += 1
            self.lines.append("  " + line)
            self.hist.append(i)
            if len(self.hist) > 24:
                self.hist = self.hist[-24:]

    __call__ = emit

    def csel(self, dst, x, y, tmp="s99"):
        def lit(v):
            return isinstance(v, int) and not (-16 <= v <= 64)
        if lit(x) and lit(y) and x != y:
            self.emit(f"s_mov_b32 {tmp}, {y}")
            self.emit(f"s_cselect_b32 {dst}, {x}, {tmp}")
        else:
            self.emit(f"s_cselect_b32 {dst}, {x}, {y}")

    def trace_begin(self):
        self.emit("s_memrealtime s[90:91]")

    def trace_end(self, kid, wsrd="s[4:7]"):
        E = self.emit
        E("s_waitcnt vmcnt(0) lgkmcnt(0)")
        E("s_memrealtime s[92:93]")
        E("s_waitcnt lgkmcnt(0)")
        E("v_mov_b32 v2, s90")
        E("v_mov_b32 v3, s92")
        E("s_lshl_b32 s94, s2, 6")
        E("s_lshl_b32 s95, s8, 3")
        E("s_add_u32 s94, s94, s95")
        E(f"s_add_u32 s94, s94, {0xA000000 + kid*0x10000}")
        E("v_mov_b32 v4, 0")
        E("s_mov_b64 exec, 1")
        E(f"buffer_store_dwordx2 v[2:3], v4, {wsrd}, s94 offen")

    def fence(self):
        worst = 0
        for p in self.hist:
            n = 5
            if p.kind == "mfma": n = {4: 8, 8: 12}[p.passes]
            worst = max(worst, n - (self.pos - p.pos - 1))
        while worst > 0:
            k = min(worst, 16)
            self.lines.append(f"  s_nop {k-1}"); self.pos += k; worst -= k
        self.hist = []

    def loop(self, label, bodyfn, tailfn):
        s = Asm(self.hist, self.pos)
        bodyfn(s); tailfn(s)
        n1 = len(s.lines)
        bodyfn(s); tailfn(s)
        first, second = s.lines[:n1], s.lines[n1:]
        if first != second:
            self.fence()
            s2 = Asm([], self.pos)
            bodyfn(s2); tailfn(s2); m1 = len(s2.lines)
            bodyfn(s2); tailfn(s2)
            c1, c2 = s2.lines[:m1], s2.lines[m1:]
            m2 = len(s2.lines); bodyfn(s2); tailfn(s2); c3 = s2.lines[m2:]
            assert c2 == c3, "loop not stable"
            self.label(label); self.lines += c2; self.hist = s2.hist; self.pos = s2.pos
        else:
            self.label(label); self.lines += second; self.hist = s.hist; self.pos = s.pos

    def text(self):
        return "\n".join(self.lines) + "\n"
```

```python
from dsl import Asm
from layout import *
import math, struct

QSCALE = struct.unpack("<I", struct.pack("<f", (20 ** -0.5) * math.log2(math.e)))[0]
NB = 3; NST = 10; STB = 49152
K1_LDS = NB * STB

def gen_k1_full(name="proj_kernel"):
    a = Asm(); A = a.emit
    def vr(b, n): return f"v[{b}:{b+n-1}]"
    ACC = 64
    FX = [16, 24]; FW = [32, 40]
    XO = [[128+4*g+k for k in range(4)] for g in range(3)]
    WO = [[54, 55], [56, 57], [58, 59]]
    DX = list(range(16, 24)); DW = list(range(24, 28))
    T = 4
    a.raw(f".globl {name}\n.p2align 8\n.type {name},@function\n{name}:")
    if TRACE: a.trace_begin()
    A("s_cmp_ge_u32 s2, 256")
    A(f"s_cbranch_scc1 L_{name}_exit")
    if PROF1: A("s_memtime s[72:73]")
    A("s_load_dwordx4 s[20:23], s[0:1], 0")
    A("s_load_dwordx2 s[26:27], s[0:1], 32")
    A("s_load_dwordx2 s[4:5], s[0:1], 80")
    A("v_and_b32 v1, 63, v0")
    A("v_lshrrev_b32 v2, 6, v0")
    A("v_readfirstlane_b32 s8, v2")
    A("s_and_b32 s62, s2, 7")
    A("s_lshr_b32 s63, s2, 3")
    A("s_lshr_b32 s9, s62, 2")
    A("s_bfe_u32 s10, s62, 0x10001")
    A("s_bitcmp1_b32 s62, 0")
    A(f"s_cbranch_scc1 L_{name}_h1")
    A("s_lshr_b32 s11, s63, 3")
    A("s_and_b32 s12, s63, 7")
    A(f"s_branch L_{name}_hd")
    a.label(f"L_{name}_h1")
    A("s_cmp_ge_u32 s63, 28")
    A(f"s_cbranch_scc1 L_{name}_aux")
    A("s_mul_i32 s11, s63, 9363")
    A("s_lshr_b32 s11, s11, 16")
    A("s_mul_i32 s12, s11, 7")
    A("s_sub_u32 s12, s63, s12")
    A("s_add_u32 s12, s12, 8")
    a.label(f"L_{name}_hd")
    A("s_lshl_b32 s10, s10, 2")
    A("s_add_u32 s11, s11, s10")
    A("s_and_b32 s13, s8, 3")
    A("s_bfe_u32 s14, s8, 0x10002")
    A("s_waitcnt lgkmcnt(0)")
    A("s_mov_b32 s28, s20"); A("s_mov_b32 s29, s21")
    A(f"s_mov_b32 s30, {2048*1280}"); A("s_mov_b32 s31, 0x00020000")
    A("s_cmp_eq_u32 s9, 0")
    A("s_cselect_b32 s32, s22, s26"); A("s_cselect_b32 s33, s23, s27")
    A(f"s_mov_b32 s34, {640*3840}"); A("s_mov_b32 s35, 0x00020000")
    A("s_mov_b32 s6, 0x10000000"); A("s_mov_b32 s7, 0x00020000")
    A("s_cmp_lt_u32 s8, 8")
    A(f"s_cbranch_scc1 L_{name}_compute")
    A("s_sub_u32 s15, s8, 8")
    A(f"v_lshrrev_b32 v{T}, 3, v1")
    A(f"v_lshrrev_b32 v{T+1}, 4, v1")
    A(f"v_and_b32 v{T+2}, 7, v1")
    A("s_lshl_b32 s16, s11, 8")
    A("s_lshl_b32 s17, s15, 6")
    A("s_add_u32 s16, s16, s17")
    A(f"v_add_u32 v{T}, s16, v{T}")
    A("s_movk_i32 s17, 1280")
    A(f"v_mul_lo_u32 v{T}, v{T}, s17")
    for p in range(8):
        A(f"v_add_u32 v{T+3}, {4*(p%2)}, v{T+1}")
        A(f"v_xor_b32 v{T+3}, v{T+2}, v{T+3}")
        A(f"v_lshl_add_u32 v{DX[p]}, v{T+3}, 4, v{T}")
        if p: A(f"v_add_u32 v{DX[p]}, {p*8*1280}, v{DX[p]}")
    A(f"v_and_b32 v{T+2}, 15, v1")
    A(f"v_lshlrev_b32 v{T+3}, 2, v{T+1}")
    A(f"v_xor_b32 v{T+2}, v{T+2}, v{T+3}")
    A(f"v_lshlrev_b32 v{T+2}, 4, v{T+2}")
    A("s_lshl_b32 s16, s15, 4")
    A(f"v_add_u32 v{T+1}, s16, v{T+1}")
    A("s_movk_i32 s17, 3840")
    A(f"v_mul_lo_u32 v{T+1}, v{T+1}, s17")
    A("s_lshl_b32 s16, s12, 8")
    A(f"v_add3_u32 v{DW[0]}, v{T+1}, v{T+2}, s16")
    for p in range(1, 4):
        A(f"v_add_u32 v{DW[p]}, {p*4*3840}, v{DW[0]}")
    A("s_lshl_b32 s18, s15, 13")
    A("s_lshl_b32 s19, s15, 12")
    A("s_add_u32 s19, s19, 32768")
    def dma(st):
        base = (st % NB) * STB
        A(f"s_movk_i32 s36, {st*128}")
        A(f"s_mov_b32 s37, {st*64*3840}")
        for p in range(8):
            A(f"s_add_u32 m0, s18, {base+p*1024}")
            A("s_nop 0")
            A(f"buffer_load_dwordx4 v{DX[p]}, s[28:31], s36 offen lds")
        for p in range(4):
            A(f"s_add_u32 m0, s19, {base+p*1024}")
            A("s_nop 0")
            A(f"buffer_load_dwordx4 v{DW[p]}, s[32:35], s37 offen lds")
    for st in range(NB):
        dma(st)
    for st in range(NST):
        last = min(max(NB - 1, st - 3 + NB), NST - 1)
        A(f"s_waitcnt vmcnt({12*(last-st)})")
        A("s_barrier")
        if st >= 2 and st - 2 + NB < NST:
            dma(st - 2 + NB)
    A(f"s_branch L_{name}_exit")
    a.label(f"L_{name}_compute")
    A(f"v_and_b32 v{T}, 31, v1")
    A(f"v_lshrrev_b32 v{T+1}, 5, v1")
    A(f"v_bfe_u32 v{T+2}, v1, 1, 3")
    A(f"v_xor_b32 v{T+2}, v{T+2}, v{T+1}")
    A(f"v_lshlrev_b32 v{T+3}, 7, v{T}")
    A("s_lshl_b32 s16, s13, 13")
    A(f"v_add_u32 v{T+3}, s16, v{T+3}")
    A(f"v_lshl_add_u32 v{T+3}, v{T+2}, 4, v{T+3}")
    for k in range(4):
        A(f"v_xor_b32 v{XO[0][k]}, {k<<5}, v{T+3}")
    A(f"v_bfe_u32 v{T}, v1, 4, 1")
    A(f"v_bfe_u32 v{T+2}, v1, 2, 2")
    A(f"v_and_b32 v{T+3}, 3, v1")
    A(f"v_lshlrev_b32 v{T+4}, 3, v{T+1}")
    A(f"v_add_u32 v{T+4}, v{T+4}, v{T+2}")
    A(f"v_lshlrev_b32 v{T+4}, 8, v{T+4}")
    A(f"v_add_u32 v{T+4}, 32768, v{T+4}")
    A(f"v_lshlrev_b32 v{T+5}, 1, v{T}")
    A(f"v_lshrrev_b32 v{T+6}, 1, v{T+3}")
    A(f"v_add_u32 v{T+5}, v{T+5}, v{T+6}")
    A(f"v_lshl_add_u32 v{T+4}, v{T+5}, 4, v{T+4}")
    A(f"v_and_b32 v{T+6}, 1, v{T+3}")
    A(f"v_lshl_add_u32 v{T+4}, v{T+6}, 3, v{T+4}")
    A(f"v_lshlrev_b32 v{T+2}, 2, v{T+2}")
    A("s_lshl_b32 s16, s14, 3")
    for ct in range(2):
        A(f"s_add_u32 s17, s16, {4*ct}")
        A(f"v_xor_b32 v{T+5}, s17, v{T+2}")
        A(f"v_lshl_add_u32 v{WO[0][ct]}, v{T+5}, 4, v{T+4}")
    for g in (1, 2):
        for i in range(4):
            A(f"v_add_u32 v{XO[g][i]}, {g*STB}, v{XO[0][i]}")
        for i in range(2):
            A(f"v_add_u32 v{WO[g][i]}, {g*STB}, v{WO[0][i]}")
    for r in range(64):
        A(f"v_mov_b32 v{ACC+r}, 0")
    A("s_cmp_ge_u32 s12, 10")
    A(f"s_cbranch_scc1 L_{name}_v")

    def reads(st, ks, setid):
        g = st % NB
        for rt in range(2):
            A(f"ds_read_b128 {vr(FX[setid]+4*rt,4)}, v{XO[g][ks]} offset:{rt*4096}")
        for ct in range(2):
            for u in range(2):
                A(f"ds_read_b64_tr_b16 {vr(FW[setid]+4*ct+2*u,2)}, v{WO[g][ct]} offset:{(16*ks+4*u)*256}")
    def mfmas(setid, vtype):
        for i in range(2):
            for j in range(2):
                acc = vr(ACC + (i*2+j)*16, 16)
                if vtype:
                    A(f"v_mfma_f32_32x32x16_bf16 {acc}, {vr(FX[setid]+4*i,4)}, {vr(FW[setid]+4*j,4)}, {acc}")
                else:
                    A(f"v_mfma_f32_32x32x16_bf16 {acc}, {vr(FW[setid]+4*i,4)}, {vr(FX[setid]+4*j,4)}, {acc}")
    def mainloop(vtype):
        A("s_barrier")
        if PROF1: A("s_memtime s[74:75]")
        reads(0, 0, 0)
        for st in range(NST):
            if PROF1 and st == 5: A("s_memtime s[76:77]")
            for ks in range(4):
                cur = ks & 1; nxt = 1 - cur
                if ks < 3:
                    reads(st, ks + 1, nxt)
                    A("s_waitcnt lgkmcnt(6)")
                elif st + 1 < NST:
                    A("s_barrier")
                    reads(st + 1, 0, nxt)
                    A("s_waitcnt lgkmcnt(6)")
                else:
                    A("s_waitcnt lgkmcnt(0)")
                mfmas(cur, vtype)
    mainloop(False)
    if PROF1: A("s_memtime s[78:79]")
    a.fence()
    A("v_cmp_lt_u32 s[40:41], 31, v1")
    A("s_cmp_lt_u32 s12, 5")
    a.csel("s42", 64*1536, 64*3072, "s60")
    a.csel("s43", 1536, 3072, "s60")
    A(f"s_cselect_b32 s44, {QIMG}, {KVIMG}")
    a.csel("s45", QIMGB, KVIMGB, "s60")
    A("s_cselect_b32 s46, 0, 5")
    A(f"s_cselect_b32 s47, {QSCALE}, 1.0")
    A("s_cmp_eq_u32 s9, 0")
    A("s_cselect_b32 s44, s44, s45")
    A("s_cselect_b32 s47, s47, 1.0")
    A("s_sub_u32 s46, s12, s46")
    A("s_lshl_b32 s46, s46, 5")
    A("s_lshl_b32 s48, s14, 4")
    A("s_add_u32 s46, s46, s48")
    A("s_lshl_b32 s48, s11, 3")
    A("s_lshl_b32 s49, s13, 1")
    A("s_add_u32 s48, s48, s49")
    A("s_mul_i32 s48, s48, s43")
    A("s_add_u32 s44, s44, s48")
    A("s_add_u32 s57, s44, s43")
    A(f"v_and_b32 v{T}, 31, v1")
    A(f"v_lshlrev_b32 v{T}, 4, v{T}")
    for r in range(64):
        A(f"v_mul_f32 v{ACC+r}, s47, v{ACC+r}")
    def qoff(dst, q):
        A(f"s_mul_hi_u32 s50, {q}, s52")
        A("s_lshr_b32 s50, s50, 2")
        A("s_mul_i32 s51, s50, 5")
        A(f"s_sub_u32 s51, {q}, s51")
        A(f"s_mul_i32 {dst}, s50, s42")
        A("s_lshr_b32 s53, s51, 1")
        A("s_lshl_b32 s53, s53, 9")
        A(f"s_add_u32 {dst}, {dst}, s53")
        A("s_and_b32 s53, s51, 1")
        A("s_lshl_b32 s53, s53, 3")
        A(f"s_add_u32 {dst}, {dst}, s53")
    A("s_mov_b32 s52, 0xcccccccd")
    A("v_mov_b32 v12, 0x3f80")
    A("v_mov_b32 v13, 0")
    for ct in range(2):
        for aa in range(4):
            A(f"s_add_u32 s54, s46, {8*ct+2*aa}")
            qoff("s55", "s54")
            A("s_mov_b32 s58, s51")
            A("s_add_u32 s54, s54, 1")
            qoff("s56", "s54")
            A("s_mov_b32 s59, s51")
            A(f"v_mov_b32 v{T+1}, s55")
            A(f"v_mov_b32 v{T+2}, s56")
            A(f"v_cndmask_b32 v{T+1}, v{T+1}, v{T+2}, s[40:41]")
            A(f"v_add_u32 v{T+1}, v{T+1}, v{T}")
            for rt in range(2):
                b = ACC + (ct*2+rt)*16 + 4*aa
                P = 16 + 2*((ct*8+aa*2+rt) % 8)
                A(f"v_cvt_pk_bf16_f32 v{P}, v{b}, v{b+1}")
                A(f"v_cvt_pk_bf16_f32 v{P+1}, v{b+2}, v{b+3}")
                A(f"buffer_store_dwordx2 {vr(P,2)}, v{T+1}, s[4:7], {'s57' if rt else 's44'} offen")
            lbl = f"L_{name}_kc{ct}{aa}"
            A("s_cmp_lt_u32 s12, 5")
            A(f"s_cbranch_scc1 {lbl}")
            A("s_cmp_eq_u32 s58, 4")
            A("s_cselect_b32 s60, -1, 0")
            A("s_cmp_eq_u32 s59, 4")
            A("s_cselect_b32 s61, -1, 0")
            A("s_or_b32 s49, s60, s61")
            A("s_cmp_eq_u32 s49, 0")
            A(f"s_cbranch_scc1 {lbl}")
            A("s_mov_b64 exec, s[60:61]")
            A(f"buffer_store_dwordx2 v[12:13], v{T+1}, s[4:7], s44 offen offset:8")
            A(f"buffer_store_dwordx2 v[12:13], v{T+1}, s[4:7], s57 offen offset:8")
            A("s_mov_b64 exec, -1")
            a.label(lbl)
    A(f"s_branch L_{name}_end")
    a.label(f"L_{name}_v")
    a.fence()
    mainloop(True)
    if PROF1: A("s_memtime s[78:79]")
    a.fence()
    A("s_cmp_eq_u32 s9, 0")
    a.csel("s44", KVIMG, KVIMGB, "s60")
    A("s_lshl_b32 s48, s11, 3")
    A("s_lshl_b32 s49, s13, 1")
    A("s_add_u32 s48, s48, s49")
    A("s_mul_i32 s48, s48, 3072")
    A("s_add_u32 s44, s44, s48")
    A("s_add_u32 s44, s44, 1536")
    A("s_sub_u32 s46, s12, 10")
    A("s_lshl_b32 s46, s46, 7")
    A("s_lshl_b32 s48, s14, 6")
    A("s_add_u32 s46, s46, s48")
    A(f"v_and_b32 v{T}, 31, v1")
    A(f"v_lshrrev_b32 v{T+1}, 5, v1")
    A(f"v_mul_u32_u24 v{T+1}, 384, v{T+1}")
    A("s_mov_b32 s50, 52429")
    A(f"s_mov_b32 s51, {64*3072}")
    for ct in range(2):
        A(f"s_add_u32 s48, s46, {32*ct}")
        A(f"v_add_u32 v{T+2}, s48, v{T}")
        A(f"v_mul_u32_u24 v{T+3}, s50, v{T+2}")
        A(f"v_lshrrev_b32 v{T+3}, 20, v{T+3}")
        A(f"v_mul_u32_u24 v{T+4}, 20, v{T+3}")
        A(f"v_sub_u32 v{T+4}, v{T+2}, v{T+4}")
        A(f"v_mul_lo_u32 v{T+3}, v{T+3}, s51")
        A(f"v_lshl_add_u32 v{T+3}, v{T+4}, 4, v{T+3}")
        A(f"v_add_u32 v{T+3}, v{T+3}, v{T+1}")
        A(f"v_cmp_lt_u32 s[60:61], 15, v{T+4}")
        A(f"v_cmp_eq_u32 vcc, 16, v{T+4}")
        A(f"v_mov_b32 v{T+5}, 0x3f803f80")
        for i in range(4):
            A(f"v_cndmask_b32 v{32+i}, 0, v{T+5}, vcc")
        for rt in range(2):
            for cc in range(2):
                b = ACC + (rt*2+ct)*16 + 8*cc
                P = 16 + 4*((ct*4+rt*2+cc) % 4)
                for i in range(4):
                    A(f"v_cvt_pk_bf16_f32 v{P+i}, v{b+2*i}, v{b+2*i+1}")
                A(f"s_add_u32 s57, s44, {rt*3072+cc*768}")
                A(f"buffer_store_dwordx4 {vr(P,4)}, v{T+3}, s[4:7], s57 offen")
                A("s_mov_b64 exec, s[60:61]")
                A(f"buffer_store_dwordx4 v[32:35], v{T+3}, s[4:7], s57 offen offset:64")
                A("s_mov_b64 exec, -1")
    A(f"s_branch L_{name}_end")
    a.label(f"L_{name}_aux")
    a.fence()
    A("s_cmp_lt_u32 s8, 4")
    A(f"s_cbranch_scc1 L_{name}_aux2")
    A("s_barrier")
    A(f"s_branch L_{name}_exit")
    a.label(f"L_{name}_aux2")
    from k1aux import gen_aux
    gen_aux(a, name)
    a.label(f"L_{name}_end")
    if PROF1:
        A("s_memtime s[80:81]")
        A("s_waitcnt vmcnt(0)")
        A("s_memtime s[82:83]")
        A("s_waitcnt lgkmcnt(0)")
        for i, r in enumerate((72, 74, 76, 78, 80, 82)):
            A(f"v_mov_b32 v{16+i}, s{r}")
        A("s_lshl_b32 s84, s2, 3")
        A("s_add_u32 s84, s84, s8")
        A("s_lshl_b32 s84, s84, 5")
        A("s_add_u32 s84, s84, 0x8000000")
        A("v_mov_b32 v24, 0")
        A("s_mov_b64 exec, 1")
        A("buffer_store_dwordx4 v[16:19], v24, s[4:7], s84 offen")
        A("buffer_store_dwordx2 v[20:21], v24, s[4:7], s84 offen offset:16")
    if TRACE: a.trace_end(0)
    a.label(f"L_{name}_exit")
    A("s_endpgm")
    desc = f""".section .rodata,"a"
.p2align 6
.amdhsa_kernel {name}
  .amdhsa_next_free_vgpr 168
  .amdhsa_next_free_sgpr 102
  .amdhsa_accum_offset 168
  .amdhsa_group_segment_fixed_size 0
  .amdhsa_kernarg_size 88
  .amdhsa_user_sgpr_count 2
  .amdhsa_user_sgpr_kernarg_segment_ptr 1
  .amdhsa_system_sgpr_workgroup_id_x 1
.end_amdhsa_kernel
.text
"""
    return a.text(), desc, a.nops
```

```python
from layout import *
def gen_aux(a, name):
    A = a.emit
    def vr(b, n): return f"v[{b}:{b+n-1}]"
    A("s_lshr_b32 s9, s62, 1")
    A("s_lshl_b32 s9, s9, 2")
    A("s_add_u32 s9, s9, s63")
    A("s_sub_u32 s9, s9, 28")
    A("s_waitcnt lgkmcnt(0)")
    A("s_load_dwordx2 s[24:25], s[0:1], 56")
    A("s_load_dwordx2 s[26:27], s[0:1], 16")
    A("s_load_dwordx2 s[36:37], s[0:1], 48")
    A("s_waitcnt lgkmcnt(0)")
    A("s_mov_b32 s6, 0x10000000")
    A("s_mov_b32 s7, 0x00020000")
    A("s_mov_b32 s28, s20"); A("s_mov_b32 s29, s21"); A(f"s_mov_b32 s30, {2048*1280}"); A("s_mov_b32 s31, 0x00020000")
    A("s_mov_b32 s32, s24"); A("s_mov_b32 s33, s25"); A("s_mov_b32 s34, 1280"); A("s_mov_b32 s35, 0x00020000")
    A("s_mov_b32 s40, s26"); A("s_mov_b32 s41, s27"); A(f"s_mov_b32 s42, {640*1280}"); A("s_mov_b32 s43, 0x00020000")
    A("s_mov_b32 s44, s36"); A("s_mov_b32 s45, s37"); A(f"s_mov_b32 s46, {640*1280}"); A("s_mov_b32 s47, 0x00020000")
    A("s_or_b32 s10, s9, s8")
    A("s_cmp_lg_u32 s10, 0")
    A(f"s_cbranch_scc1 L_{name}_nz")
    A("v_lshlrev_b32 v5, 4, v1")
    for i in range(4): A(f"v_mov_b32 v{16+i}, 0")
    A(f"s_mov_b32 s10, {FLAGS}")
    for i in range(4):
        A(f"buffer_store_dwordx4 v[16:19], v5, s[4:7], s10 offen offset:{i*1024}")
    a.label(f"L_{name}_nz")
    A("v_lshlrev_b32 v5, 4, v1")
    A("s_mul_i32 s17, s8, 10240")
    A("v_add_u32 v6, s17, v5")
    def slab(i, srd, soff):
        for g in range(3):
            n = 4 if g < 2 else 2
            A(f"s_add_u32 m0, s17, {i*40960+g*4096}")
            A(f"s_add_u32 s19, {soff}, {g*4096}")
            for p in range(n):
                A(f"buffer_load_dwordx4 v6, {srd}, s19 offen offset:{p*1024} lds")
    A("s_mul_i32 s18, s9, 40960")
    slab(0, "s[40:43]", "s18")
    A("s_cmp_lt_u32 s9, 4")
    A(f"s_cbranch_scc1 L_{name}_s1a")
    A("s_sub_u32 s18, s9, 4")
    A("s_mul_i32 s18, s18, 40960")
    slab(1, "s[44:47]", "s18")
    A(f"s_branch L_{name}_s1d")
    a.label(f"L_{name}_s1a")
    A("s_add_u32 s18, s9, 16")
    A("s_mul_i32 s18, s18, 40960")
    slab(1, "s[40:43]", "s18")
    a.label(f"L_{name}_s1d")
    A("s_cmp_ge_u32 s9, 8")
    A(f"s_cbranch_scc1 L_{name}_s2d")
    A("s_add_u32 s18, s9, 12")
    A("s_mul_i32 s18, s18, 40960")
    slab(2, "s[44:47]", "s18")
    a.label(f"L_{name}_s2d")
    A("v_and_b32 v3, 3, v1")
    A("v_mul_u32_u24 v165, 320, v3")
    for i in range(20):
        A(f"buffer_load_dwordx4 {vr(84+4*i,4)}, v165, s[32:35], 0 offen offset:{i*16}")
    for ps in range(2):
        A("v_lshrrev_b32 v2, 2, v1")
        A("s_lshl_b32 s10, s9, 7")
        A("s_lshl_b32 s11, s8, 4")
        A("s_add_u32 s10, s10, s11")
        A(f"s_add_u32 s10, s10, {64*ps}")
        A("v_add_u32 v2, s10, v2")
        A("s_movk_i32 s11, 1280")
        A("v_mul_lo_u32 v4, v2, s11")
        A("v_add_u32 v164, v4, v165")
        A("v_mov_b32 v166, 0")
        for i in range(20):
            A(f"buffer_load_dwordx4 {vr(4+4*i,4)}, v164, s[28:31], 0 offen offset:{i*16}")
        A("s_waitcnt vmcnt(0)")
        for i in range(80):
            A(f"v_dot2_f32_bf16 v166, v{4+i}, v{84+i}, v166")
        A("s_nop 3")
        A("v_add_f32_dpp v9, v166, v166 quad_perm:[1,0,3,2] row_mask:0xf bank_mask:0xf")
        A("v_add_f32_dpp v8, v9, v9 quad_perm:[2,3,0,1] row_mask:0xf bank_mask:0xf")
        A("v_mul_f32 v8, 0xbfb8aa3b, v8")
        A("v_exp_f32 v8, v8")
        A("v_add_f32 v8, 1.0, v8")
        A("v_rcp_f32 v8, v8")
        A("v_lshlrev_b32 v9, 2, v2")
        A(f"s_mov_b32 s11, {GATE}")
        A("v_cmp_eq_u32 vcc, 0, v3")
        A("s_and_saveexec_b64 s[12:13], vcc")
        A("buffer_store_dword v8, v9, s[4:7], s11 offen")
        A("s_mov_b64 exec, s[12:13]")
    A("s_barrier")
    A("v_lshlrev_b32 v5, 4, v1")
    A("v_lshrrev_b32 v2, 4, v1")
    A("v_bfe_u32 v3, v1, 2, 2")
    A("v_and_b32 v4, 3, v1")
    A("v_lshl_add_u32 v2, v2, 3, v3")
    A("v_mul_u32_u24 v2, 1280, v2")
    A("v_lshl_add_u32 v2, v4, 3, v2")
    A("s_lshl_b32 s16, s8, 5")
    A("v_add_u32 v2, s16, v2")
    for sl in range(3):
        if sl == 2:
            A("s_cmp_ge_u32 s9, 8")
            A(f"s_cbranch_scc1 L_{name}_end")
        if sl > 0:
            A("v_add_u32 v2, 40960, v2")
        b = 16 + 40*sl
        for i in range(10):
            for u in range(2):
                A(f"ds_read_b64_tr_b16 {vr(b+4*i+2*u,2)}, v2 offset:{u*4*1280+i*128}")
        A("s_waitcnt lgkmcnt(0)")
        A("s_mul_i32 s19, s8, 40")
        A("s_add_u32 s19, s19, s9")
        A(f"s_add_u32 s19, s19, {16*sl}")
        A("s_lshl_b32 s19, s19, 10")
        A(f"s_add_u32 s19, s19, {WOT}")
        for i in range(10):
            A(f"buffer_store_dwordx4 {vr(b+4*i,4)}, v5, s[4:7], s19 offen")
            A(f"s_add_u32 s19, s19, {4*40*1024}")
```

```python
from dsl import Asm
from layout import *

TILE_B = 3072
STAGE_B = 8 * TILE_B
LDS_E = 0
LDS_W = 20480
RING = LDS_W + 65536
LDS_WA = RING + 3 * STAGE_B
LDS_TOTAL = LDS_WA + 3072 + 1024
LOG2E = 0x3fb8aa3b
NPER = 4
KKP = 5

class VMQ:
    def __init__(self, a): self.a = a; self.q = []
    def issue(self, text, tag):
        self.a.emit(text); self.q.append(tag)
    def wait(self, tag):
        idx = [i for i, t in enumerate(self.q) if t == tag]
        if not idx: return
        n = len(self.q) - 1 - idx[-1]
        assert n <= 63
        self.a.emit(f"s_waitcnt vmcnt({n})")
        self.q = self.q[idx[-1] + 1:]
    def wait_all(self):
        self.a.emit("s_waitcnt vmcnt(0)"); self.q = []

def gen_k2(name="att_kernel"):
    a = Asm(); A = a.emit
    vm = VMQ(a)
    def vr(b, n): return f"v[{b}:{b+n-1}]"
    Q1 = [4, 8]; Q2 = [12, 14]
    O = [16, 32]; S = [48, 64]; P = 80
    K1 = [88, 92]; K2 = [96, 98]; V = [100, 108]
    GB = [116, 132]
    XF = [148, 156, 164, 224, 232, 240]
    WF = 172
    AK1 = [188, 189, 190]; AK2 = [191, 192, 193]; AV = [194, 195, 196]
    AW = [[197, 198], [199, 200]]
    vDma = 201; vDmaW = [202, 203, 204, 205]; vX = 206; vG = 207; vRow = 208
    lK1, lK2, lV = 209, 210, 211
    T = 212
    a.raw(f".globl {name}\n.p2align 8\n.type {name},@function\n{name}:")
    if TRACE: a.trace_begin()
    A("s_cmp_ge_u32 s2, 256")
    A(f"s_cbranch_scc1 L_{name}_exit")
    if PROF2: A("s_memtime s[42:43]")
    A("s_load_dwordx2 s[4:5], s[0:1], 80")
    A("s_load_dwordx2 s[72:73], s[0:1], 0")
    A("s_load_dwordx4 s[76:79], s[0:1], 32")
    A("s_load_dwordx2 s[64:65], s[0:1], 72")
    A("v_and_b32 v1, 63, v0")
    A("v_lshrrev_b32 v3, 6, v0")
    A("v_readfirstlane_b32 s8, v3")
    A("s_and_b32 s62, s2, 7")
    A("s_lshr_b32 s63, s2, 3")
    A("s_lshl_b32 s9, s62, 2")
    A("s_and_b32 s10, s63, 3")
    A("s_add_u32 s9, s9, s10")
    A("s_lshr_b32 s10, s63, 2")
    A("s_and_b32 s37, s8, 3")
    A("s_lshr_b32 s38, s8, 2")
    A("s_lshl_b32 s39, s37, 1")
    A("s_add_u32 s39, s39, s38")
    A("v_and_b32 v2, 31, v1")
    A("v_lshrrev_b32 v3, 5, v1")
    A("v_cmp_lt_u32 s[16:17], 31, v1")
    A(f"v_lshlrev_b32 v{lK1}, 4, v1")
    A(f"v_lshlrev_b32 v{lK2}, 4, v2")
    A(f"v_lshl_add_u32 v{lK2}, v3, 3, v{lK2}")
    A(f"v_add_u32 v{lK2}, 1024, v{lK2}")
    A(f"v_min_u32 v{T+1}, 21, v2")
    A(f"v_mul_u32_u24 v{T}, 384, v3")
    A(f"v_lshl_add_u32 v{lV}, v{T+1}, 4, v{T}")
    A(f"v_add_u32 v{lV}, 1536, v{lV}")
    A("s_waitcnt lgkmcnt(0)")
    if PROF2: A("s_memtime s[48:49]")
    A("s_mov_b32 s6, 0x10000000"); A("s_mov_b32 s7, 0x00020000")
    A("s_mov_b32 s66, 256"); A("s_mov_b32 s67, 0x00020000")
    A(f"s_mov_b32 s74, {2048*1280}"); A("s_mov_b32 s75, 0x00020000")
    A("s_mul_i32 s57, s9, 800")
    A("s_add_u32 s44, s78, s57"); A("s_addc_u32 s45, s79, 0"); A("s_mov_b32 s46, 800"); A("s_mov_b32 s47, 0x00020000")
    from k2fm import fm_preload, fm_pack
    fm_preload(a, dict(vm=vm, T=T, LDS_WA=LDS_WA, name=name))
    A(f"s_mul_i32 s11, s9, {64*TILE_B}")
    A(f"s_add_u32 s11, s11, {KVIMG}")
    A("s_mul_i32 s18, s8, 3072")
    A(f"v_add_u32 v{vDma}, s18, v{lK1}")
    A("s_lshl_b32 s19, s10, 3")
    A("s_lshl_b32 s20, s37, 1")
    A("s_add_u32 s20, s20, s19")
    A("s_lshl_b32 s21, s9, 6")
    A("s_add_u32 s20, s20, s21")
    A("s_mul_i32 s20, s20, 1536")
    A(f"s_add_u32 s20, s20, {QIMG}")
    for t in range(2):
        vm.issue(f"buffer_load_dwordx4 {vr(Q1[t],4)}, v{lK1}, s[4:7], s20 offen offset:{t*1536}", "q")
        vm.issue(f"buffer_load_dwordx2 {vr(Q2[t],2)}, v{lK2}, s[4:7], s20 offen offset:{t*1536}", "q")
    def dma_kv(st):
        A(f"s_add_u32 m0, s18, {RING + (st%3)*STAGE_B}")
        A(f"s_add_u32 s23, s11, {st*STAGE_B}")
        for p in range(3):
            vm.issue(f"buffer_load_dwordx4 v{vDma}, s[4:7], s23 offen offset:{p*1024} lds", f"kv{st}")
    dma_kv(0)
    if PROF2: A("s_memtime s[50:51]")
    A("s_add_u32 s19, s19, s39")
    A("s_lshl_b32 s21, s19, 5")
    A(f"v_add_u32 v{vRow}, s21, v2")
    A(f"v_lshlrev_b32 v{T}, 2, v{vRow}")
    A(f"s_mov_b32 s22, {GATE}")
    vm.issue(f"buffer_load_dword v{vG}, v{T}, s[4:7], s22 offen", "g")
    ctx0 = dict(vm=vm, T=T, LDS_WA=LDS_WA, vr=vr, name=name)
    A(f"s_mul_i32 s27, s38, {4*TILE_B}")
    for b in range(3):
        A(f"s_add_u32 s29, s27, {RING + b*STAGE_B}")
        A(f"v_add_u32 v{AK1[b]}, s29, v{lK1}")
        A(f"v_add_u32 v{AK2[b]}, s29, v{lK2}")
        A(f"v_add_u32 v{AV[b]}, s29, v{lV}")
    for t in range(2):
        for r in range(16):
            A(f"v_mov_b32 v{O[t]+r}, 0")
    if PROF2: A("s_memtime s[68:69]")
    vm.wait("kv0")
    if PROF2: A("s_memtime s[70:71]")
    for t in range(2):
        A(f"v_cndmask_b32 v{Q2[t]}, v{Q2[t]}, 0, s[16:17]")
        A(f"v_cndmask_b32 v{Q2[t]+1}, v{Q2[t]+1}, 0, s[16:17]")
    A("s_barrier")
    A(f"v_add_u32 v{T}, {RING}, v{lK1}")
    A(f"v_add_u32 v{T+1}, {RING}, v{lK2}")
    A(f"ds_read_b128 {vr(K1[0],4)}, v{T}")
    A(f"ds_read_b64 {vr(K2[0],2)}, v{T+1}")
    A("s_waitcnt lgkmcnt(0)")
    for t in range(2):
        A(f"v_mfma_f32_32x32x16_bf16 {vr(S[t],16)}, {vr(K1[0],4)}, {vr(Q1[t],4)}, 0")
        A(f"v_mfma_f32_32x32x8bf16_1k {vr(S[t],16)}, {vr(K2[0],2)}, {vr(Q2[t],2)}, {vr(S[t],16)}")
    A(f"ds_read_b128 {vr(K1[0],4)}, v{AK1[0]}")
    A(f"ds_read_b64 {vr(K2[0],2)}, v{AK2[0]}")
    A(f"ds_read_b128 {vr(V[0],4)}, v{AV[0]}")
    A(f"ds_read_b128 {vr(V[0]+4,4)}, v{AV[0]} offset:768")
    def setmax_from(t, q2):
        A(f"v_mov_b32 v{T+11}, v{t}")
        A(f"v_permlane32_swap_b32 v{t}, v{T+11}")
        A(f"v_max_f32 v{t}, v{t}, v{T+11}")
        A(f"v_sub_f32 v{t}, 0, v{t}")
        A(f"v_cvt_pk_bf16_f32 v{t}, v{t}, 0")
        A(f"v_cndmask_b32 v{q2}, v{q2}, v{t}, s[16:17]")
    for t in range(2):
        Sb = S[t]
        A(f"v_max3_f32 v{T}, v{Sb}, v{Sb+1}, v{Sb+2}")
        for r in range(3, 15, 2):
            A(f"v_max3_f32 v{T}, v{T}, v{Sb+r}, v{Sb+r+1}")
        A(f"v_max_f32 v{T}, v{T}, v{Sb+15}")
        setmax_from(T, Q2[t])
    A("s_waitcnt lgkmcnt(0)")
    A(f"v_mfma_f32_32x32x16_bf16 {vr(S[0],16)}, {vr(K1[0],4)}, {vr(Q1[0],4)}, 0")
    A(f"v_mfma_f32_32x32x8bf16_1k {vr(S[0],16)}, {vr(K2[0],2)}, {vr(Q2[0],2)}, {vr(S[0],16)}")
    for i in range(4):
        A(f"v_mov_b32 v{P+4+i}, 0")
        A(f"v_mov_b32 v{V[1]+4+i}, 0")
    A(f"v_mov_b32 v{S[1]+14}, 0")
    A(f"v_mov_b32 v{S[1]+15}, 0")
    a.fence()

    hooks_fm = 8 + 6

    from k2fm import gen_fm2, gen_reduce_publish, gen_signal, gen_linb_prefetch, gen_linb_final, fm_preload, gen_signal_pre, fm_loads
    ctx = dict(lK1=lK1, lK2=lK2, lV=lV, LDS_WA=LDS_WA, vr=vr, GB=GB, T=T, vG=vG, vRow=vRow, name=name, vm=vm, XF=XF, WF=WF, LDS_W=LDS_W, LDS_E=LDS_E)

    for st in range(8):
        for u in range(8):
            U = st*8 + u
            p = u & 1; n = 1 - p; kt = u >> 1
            buf = st % 3; nbuf = (st + 1) % 3
            if PROF2 and u == 0: A(f"s_memtime s[{84+2*st}:{85+2*st}]") if st < 8 else None
            A("s_waitcnt lgkmcnt(0)")
            if u == 6 and st < 7:
                vm.wait(f"kv{st+1}")
                if U == hooks_fm + 16: gen_signal_pre(a, ctx)
                A("s_barrier")
                if st + 2 < 8: dma_kv(st + 2)
            if U == 0: dma_kv(1)
            if U == 1: fm_loads(a, ctx)
            if U == 6: fm_pack(a, dict(ctx0, regbase=224))
            if U == hooks_fm: gen_fm2(a, ctx)
            if U == hooks_fm + 8: gen_reduce_publish(a, ctx)
            if U == hooks_fm + 16: gen_signal(a, ctx)
            if U == 7*8 + 5: gen_linb_prefetch(a, ctx)
            if p == 0:
                ktn = kt + 1
                bb, kk_ = (buf, ktn) if ktn < 4 else (nbuf, 0)
                if not (st == 7 and ktn == 4):
                    A(f"ds_read_b128 {vr(K1[ktn%2],4)}, v{AK1[bb]} offset:{kk_*TILE_B}")
                    A(f"ds_read_b64 {vr(K2[ktn%2],2)}, v{AK2[bb]} offset:{kk_*TILE_B}")
            else:
                ktn = kt + 1
                bb, kk_ = (buf, ktn) if ktn < 4 else (nbuf, 0)
                if not (st == 7 and ktn == 4):
                    A(f"ds_read_b128 {vr(V[ktn%2],4)}, v{AV[bb]} offset:{kk_*TILE_B}")
            Sb = S[p]; Sp = S[n]
            ktq = (u + 1) >> 1
            Kset = ktq % 2
            last = (st == 7 and u == 7)
            def ex(r): A(f"v_exp_f32 v{Sb+r}, v{Sb+r}")
            def cv(i): A(f"v_cvt_pk_bf16_f32 v{P+i}, v{Sb+2*i}, v{Sb+2*i+1}")
            A(f"v_cvt_pk_bf16_f32 v{P+7}, v{Sp+14}, v{Sp+15}")
            if not last:
                A(f"v_mfma_f32_32x32x16_bf16 {vr(S[n],16)}, {vr(K1[Kset],4)}, {vr(Q1[n],4)}, 0")
            ex(0); ex(1); ex(2); cv(0); ex(3)
            ktp = ((u - 1) >> 1) % 4 if u > 0 else 3
            A(f"v_mfma_f32_32x32x16_bf16 {vr(O[n],16)}, {vr(V[ktp%2]+4,4)}, {vr(P+4,4)}, {vr(O[n],16)}")
            if p == 1:
                ktn = kt + 1
                bb, kk_ = (buf, ktn) if ktn < 4 else (nbuf, 0)
                if not (st == 7 and ktn == 4):
                    A(f"ds_read_b128 {vr(V[ktn%2]+4,4)}, v{AV[bb]} offset:{kk_*TILE_B+768}")
            ex(4); cv(1); ex(5)
            ex(6); cv(2); ex(7)
            if not last:
                A(f"v_mfma_f32_32x32x8bf16_1k {vr(S[n],16)}, {vr(K2[Kset],2)}, {vr(Q2[n],2)}, {vr(S[n],16)}")
            ex(8); cv(3); ex(9)
            ex(10); cv(4); ex(11)
            A(f"v_mfma_f32_32x32x16_bf16 {vr(O[p],16)}, {vr(V[kt%2],4)}, {vr(P,4)}, {vr(O[p],16)}")
            ex(12); cv(5); ex(13)
            ex(14); cv(6); ex(15)
    if PROF2: A("s_memtime s[30:31]")
    if PROF2: A("s_waitcnt lgkmcnt(0)")
    if PROF2: A("s_mov_b32 s100, s30")
    A(f"v_cvt_pk_bf16_f32 v{P+7}, v{S[1]+14}, v{S[1]+15}")
    A(f"v_mfma_f32_32x32x16_bf16 {vr(O[1],16)}, {vr(V[1]+4,4)}, {vr(P+4,4)}, {vr(O[1],16)}")
    a.fence()
    CMB = LDS_W
    A(f"v_lshlrev_b32 v{T}, 2, v1")
    A("s_mul_i32 s27, s37, 6144")
    A("s_mul_i32 s29, s38, 3072")
    A("s_add_u32 s27, s27, s29")
    A(f"s_add_u32 s27, s27, {CMB}")
    A(f"v_add_u32 v{T+1}, s27, v{T}")
    A(f"s_xor_b32 s29, s27, 0")
    A("s_mul_i32 s29, s37, 6144")
    A("s_xor_b32 s30, s38, 1")
    A("s_mul_i32 s30, s30, 3072")
    A("s_add_u32 s29, s29, s30")
    A(f"s_add_u32 s29, s29, {CMB}")
    A(f"v_add_u32 v{T+2}, s29, v{T}")
    A("s_cmp_eq_u32 s38, 0")
    A(f"s_cbranch_scc1 L_{name}_c0")
    for r in range(12):
        A(f"ds_write_b32 v{T+1}, v{O[0]+r} offset:{r*256}")
    for r in range(16):
        A(f"v_mov_b32 v{O[0]+r}, v{O[1]+r}")
    for r in range(4): A(f"v_mov_b32 v{Q1[0]+r}, v{Q1[1]+r}")
    for r in range(2): A(f"v_mov_b32 v{Q2[0]+r}, v{Q2[1]+r}")
    A(f"s_branch L_{name}_c1")
    a.label(f"L_{name}_c0")
    for r in range(12):
        A(f"ds_write_b32 v{T+1}, v{O[1]+r} offset:{r*256}")
    a.label(f"L_{name}_c1")
    from k2fm import gen_linb_sum
    gen_linb_sum(a, ctx)
    A("s_waitcnt lgkmcnt(0)")
    A("s_barrier")
    for r in range(12):
        A(f"ds_read_b32 v{S[0]+r}, v{T+2} offset:{r*256}")
    A("s_waitcnt lgkmcnt(0)")
    for r in range(12):
        A(f"v_add_f32 v{O[0]+r}, v{O[0]+r}, v{S[0]+r}")
    OO = O[0]; QQ1 = Q1[0]; QQ2 = Q2[0]
    A("s_mov_b32 s25, 0")
    a.label(f"L_{name}_epi")
    a.fence()
    A(f"v_add_f32 v{T}, |v{OO}|, |v{OO+1}|")
    for r in range(2, 9):
        A(f"v_add_f32 v{T}, v{T}, |v{OO+r}|")
    A(f"v_add_f32 v{T+1}, |v{OO+9}|, |v{OO+10}|")
    A(f"v_add_f32 v{T+1}, v{T+1}, |v{OO+11}|")
    A(f"v_cndmask_b32 v{T+1}, v{T+1}, 0, s[16:17]")
    A(f"v_add_f32 v{T}, v{T}, v{T+1}")
    A("s_mov_b32 s26, 0x7f000000")
    A(f"v_cmp_nle_f32 vcc, v{T}, s26")
    A("s_cmp_lg_u32 s25, 0")
    A(f"s_cbranch_scc1 L_{name}_store")
    A(f"s_cbranch_vccnz L_{name}_fallback")
    a.label(f"L_{name}_store")
    a.fence()
    A(f"v_mov_b32 v{T}, v{OO+8}")
    A(f"v_mov_b32 v{T+1}, v{OO+8}")
    A(f"v_permlane32_swap_b32 v{T}, v{T+1}")
    A(f"v_rcp_f32 v{T+1}, v{T+1}")
    A(f"v_mul_f32 v{T+1}, v{T+1}, v{vG}")
    for r in range(12):
        A(f"v_mul_f32 v{OO+r}, v{OO+r}, v{T+1}")
    PK = S[0]
    for i in range(6):
        A(f"v_cvt_pk_bf16_f32 v{PK+i}, v{OO+2*i}, v{OO+2*i+1}")
    from k2fm import store_o
    store_o(a, ctx, PK, 0)
    if PROF2: A("s_memtime s[30:31]")
    if PROF2: A("s_waitcnt lgkmcnt(0)")
    if PROF2: A("s_mov_b32 s101, s30")
    gen_linb_final(a, ctx)
    A(f"s_branch L_{name}_end")
    a.label(f"L_{name}_fallback")
    a.fence()
    A("s_mov_b32 s25, 1")
    A(f"v_cndmask_b32 v{QQ2}, v{QQ2}, 0, s[16:17]")
    A(f"v_mov_b32 v{T+4}, 0xff800000")
    A("s_mov_b32 s35, s11")
    A("s_mov_b32 s36, 0")
    a.label(f"L_{name}_fb1")
    a.fence()
    A(f"buffer_load_dwordx4 {vr(K1[0],4)}, v{lK1}, s[4:7], s35 offen")
    A(f"buffer_load_dwordx2 {vr(K2[0],2)}, v{lK2}, s[4:7], s35 offen")
    A("s_waitcnt vmcnt(0)")
    A(f"v_mfma_f32_32x32x16_bf16 {vr(S[0],16)}, {vr(K1[0],4)}, {vr(QQ1,4)}, 0")
    A(f"v_mfma_f32_32x32x8bf16_1k {vr(S[0],16)}, {vr(K2[0],2)}, {vr(QQ2,2)}, {vr(S[0],16)}")
    for r in range(0, 16, 2):
        A(f"v_max3_f32 v{T+4}, v{T+4}, v{S[0]+r}, v{S[0]+r+1}")
    A(f"s_add_u32 s35, s35, {TILE_B}")
    A("s_add_u32 s36, s36, 1")
    A("s_cmp_lt_u32 s36, 64")
    A(f"s_cbranch_scc1 L_{name}_fb1")
    a.fence()
    setmax_from(T+4, QQ2)
    for r in range(16):
        A(f"v_mov_b32 v{OO+r}, 0")
    A("s_mov_b32 s35, s11")
    A("s_mov_b32 s36, 0")
    a.label(f"L_{name}_fb2")
    a.fence()
    A(f"buffer_load_dwordx4 {vr(K1[0],4)}, v{lK1}, s[4:7], s35 offen")
    A(f"buffer_load_dwordx2 {vr(K2[0],2)}, v{lK2}, s[4:7], s35 offen")
    A(f"buffer_load_dwordx4 {vr(V[0],4)}, v{lV}, s[4:7], s35 offen")
    A(f"buffer_load_dwordx4 {vr(V[0]+4,4)}, v{lV}, s[4:7], s35 offen offset:768")
    A("s_waitcnt vmcnt(0)")
    A(f"v_mfma_f32_32x32x16_bf16 {vr(S[0],16)}, {vr(K1[0],4)}, {vr(QQ1,4)}, 0")
    A(f"v_mfma_f32_32x32x8bf16_1k {vr(S[0],16)}, {vr(K2[0],2)}, {vr(QQ2,2)}, {vr(S[0],16)}")
    for r in range(16):
        A(f"v_exp_f32 v{S[0]+r}, v{S[0]+r}")
    for i in range(8):
        A(f"v_cvt_pk_bf16_f32 v{P+i}, v{S[0]+2*i}, v{S[0]+2*i+1}")
    A(f"v_mfma_f32_32x32x16_bf16 {vr(OO,16)}, {vr(V[0],4)}, {vr(P,4)}, {vr(OO,16)}")
    A(f"v_mfma_f32_32x32x16_bf16 {vr(OO,16)}, {vr(V[0]+4,4)}, {vr(P+4,4)}, {vr(OO,16)}")
    A(f"s_add_u32 s35, s35, {TILE_B}")
    A("s_add_u32 s36, s36, 1")
    A("s_cmp_lt_u32 s36, 64")
    A(f"s_cbranch_scc1 L_{name}_fb2")
    A(f"s_branch L_{name}_epi")
    a.label(f"L_{name}_end")
    if PROF2:
        A("s_memtime s[40:41]")
        A("s_waitcnt lgkmcnt(0)")
        for i in range(8):
            A(f"v_mov_b32 v{16+i}, s{84+2*i}")
        A("v_mov_b32 v24, s40")
        A("v_mov_b32 v25, s42")
        A("v_mov_b32 v26, s100")
        A("v_mov_b32 v27, s101")
        A("v_mov_b32 v28, s25")
        A("v_mov_b32 v29, s48")
        A("v_mov_b32 v31, s50")
        A("v_mov_b32 v32, s68")
        A("v_mov_b32 v33, s70")
        A("s_lshl_b32 s52, s2, 3")
        A("s_add_u32 s52, s52, s8")
        A("s_lshl_b32 s52, s52, 6")
        A("s_add_u32 s52, s52, 0x8000000")
        A("v_mov_b32 v30, 0")
        A("s_mov_b64 exec, 1")
        A("buffer_store_dwordx4 v[16:19], v30, s[4:7], s52 offen")
        A("buffer_store_dwordx4 v[20:23], v30, s[4:7], s52 offen offset:16")
        A("buffer_store_dwordx4 v[24:27], v30, s[4:7], s52 offen offset:32")
        A("v_mov_b32 v34, v29")
        A("v_mov_b32 v35, v31")
        A("v_mov_b32 v36, v32")
        A("v_mov_b32 v37, v33")
        A("buffer_store_dword v28, v30, s[4:7], s52 offen offset:48")
        A("s_add_u32 s52, s52, 0x100000")
        A("buffer_store_dwordx4 v[34:37], v30, s[4:7], s52 offen")
    if TRACE: a.trace_end(1)
    a.label(f"L_{name}_exit")
    A("s_endpgm")
    desc = f""".section .rodata,"a"
.p2align 6
.amdhsa_kernel {name}
  .amdhsa_next_free_vgpr 256
  .amdhsa_next_free_sgpr 102
  .amdhsa_accum_offset 256
  .amdhsa_group_segment_fixed_size 0
  .amdhsa_kernarg_size 88
  .amdhsa_user_sgpr_count 2
  .amdhsa_user_sgpr_kernarg_segment_ptr 1
  .amdhsa_system_sgpr_workgroup_id_x 1
.end_amdhsa_kernel
.text
"""
    return a.text(), desc, a.nops
```

```python
from layout import *
LOG2E = 0x3fb8aa3b

def fm_preload(a, ctx):
    A = a.emit; vm = ctx["vm"]; T = ctx["T"]; name = ctx["name"]
    A("s_cmp_lg_u32 s8, 0")
    A(f"s_cbranch_scc1 L_{name}_nowp")
    A(f"s_mov_b32 m0, {ctx['LDS_WA'] + 3072}")
    A(f"v_lshlrev_b32 v{T}, 4, v1")
    A(f"buffer_load_dwordx4 v{T}, s[44:47], 0 offen lds")
    a.label(f"L_{name}_nowp")

def fm_pack(a, ctx):
    A = a.emit; T = ctx["T"]; name = ctx["name"]
    X = T
    A("s_cmp_lg_u32 s8, 0")
    A(f"s_cbranch_scc1 L_{name}_nopk")
    A(f"v_subrev_u32 v{X}, 2, v2")
    A(f"v_cmp_gt_u32 vcc, 18, v2")
    A(f"v_cndmask_b32 v{X}, v{X}, v2, vcc")
    A(f"v_subrev_u32 v{X+1}, 18, v2")
    A(f"v_cmp_gt_u32 vcc, 2, v{X+1}")
    A(f"v_cmp_lt_u32 s[58:59], 21, v2")
    A("s_or_b64 s[58:59], vcc, s[58:59]")
    A(f"v_cndmask_b32 v{X}, v{X}, 0, s[58:59]")
    A(f"v_lshlrev_b32 v{X}, 1, v{X}")
    A(f"v_add_u32 v{X}, {ctx['LDS_WA'] + 3072}, v{X}")
    A(f"v_mul_u32_u24 v{X+2}, 320, v3")
    A(f"v_add_u32 v{X+2}, v{X+2}, v{X}")
    A("s_or_b64 s[60:61], s[58:59], s[16:17]")
    A(f"v_lshlrev_b32 v{X+4}, 2, v1")
    A(f"v_add_u32 v{X+4}, {ctx['LDS_WA']}, v{X+4}")
    R0 = 172
    for t in range(8):
        A(f"ds_read_u16 v{R0+t}, v{X+2} offset:{t*40}")
    A("s_waitcnt lgkmcnt(0)")
    for i in range(4):
        A(f"v_lshl_or_b32 v{R0+8+i}, v{R0+2*i+1}, 16, v{R0+2*i}")
        A(f"v_cndmask_b32 v{R0+8+i}, v{R0+8+i}, 0, s[58:59]")
        A(f"ds_write_b32 v{X+4}, v{R0+8+i} offset:{i*256}")
    for t in range(4):
        A(f"ds_read_u16 v{R0+t}, v{X} offset:{640+t*40}")
    A("s_waitcnt lgkmcnt(0)")
    for i in range(2):
        A(f"v_lshl_or_b32 v{R0+8+i}, v{R0+2*i+1}, 16, v{R0+2*i}")
        A(f"v_cndmask_b32 v{R0+8+i}, v{R0+8+i}, 0, s[60:61]")
        A(f"ds_write_b32 v{X+4}, v{R0+8+i} offset:{(4+i)*256}")
    a.label(f"L_{name}_nopk")

def fm_loads(a, ctx):
    A = a.emit; vr = ctx["vr"]; vm = ctx["vm"]; lK1 = ctx["lK1"]; lK2 = ctx["lK2"]; lV = ctx["lV"]
    A("s_lshl_b32 s54, s9, 6")
    A("s_add_u32 s54, s54, s19")
    A("s_mul_i32 s55, s54, 1536")
    A(f"s_add_u32 s55, s55, {QIMGB}")
    A("s_mul_i32 s56, s54, 3072")
    A(f"s_add_u32 s56, s56, {KVIMGB}")
    vm.issue(f"buffer_load_dwordx4 {vr(148,4)}, v{lK1}, s[4:7], s55 offen", "fm")
    vm.issue(f"buffer_load_dwordx2 {vr(152,2)}, v{lK2}, s[4:7], s55 offen", "fm")
    vm.issue(f"buffer_load_dwordx4 {vr(154,4)}, v{lK1}, s[4:7], s56 offen", "fm")
    vm.issue(f"buffer_load_dwordx2 {vr(158,2)}, v{lK2}, s[4:7], s56 offen", "fm")
    vm.issue(f"buffer_load_dwordx4 {vr(160,4)}, v{lV}, s[4:7], s56 offen", "fm")
    vm.issue(f"buffer_load_dwordx4 {vr(164,4)}, v{lV}, s[4:7], s56 offen offset:768", "fm")

def gen_fm2(a, ctx):
    A = a.emit; vr = ctx["vr"]; GB = ctx["GB"]; T = ctx["T"]; vm = ctx["vm"]; name = ctx["name"]
    LDS_W = ctx["LDS_W"]; LDS_E = ctx["LDS_E"]
    a.fence()
    vm.wait("fm")
    WA = 168
    A(f"v_lshlrev_b32 v{T}, 2, v1")
    A(f"v_add_u32 v{T}, {ctx['LDS_WA']}, v{T}")
    for i in range(6):
        A(f"ds_read_b32 v{WA+i}, v{T} offset:{i*256}")
    A(f"v_cndmask_b32 v152, v152, 0, s[16:17]")
    A(f"v_cndmask_b32 v153, v153, 0, s[16:17]")
    A("s_waitcnt lgkmcnt(0)")
    Z = 224; EP = GB[0]; EN = GB[1]
    X = T
    A(f"s_mov_b32 s57, {LOG2E}")
    A("s_mul_i32 s58, s8, 6144")
    A(f"s_add_u32 s58, s58, {LDS_W}")
    PK = 240
    for side in ("q", "k"):
        B1, B2 = (148, 152) if side == "q" else (154, 158)
        A(f"v_mfma_f32_32x32x16_bf16 {vr(Z,16)}, {vr(WA,4)}, {vr(B1,4)}, 0")
        A(f"v_mfma_f32_32x32x8bf16_1k {vr(Z,16)}, {vr(WA+4,2)}, {vr(B2,2)}, {vr(Z,16)}")
        mx, mn, t1 = X, X+1, X+2
        A(f"v_max3_f32 v{mx}, v{Z}, v{Z+1}, v{Z+2}")
        A(f"v_min3_f32 v{mn}, v{Z}, v{Z+1}, v{Z+2}")
        for r in (3, 5, 7):
            A(f"v_max3_f32 v{mx}, v{mx}, v{Z+r}, v{Z+r+1}")
            A(f"v_min3_f32 v{mn}, v{mn}, v{Z+r}, v{Z+r+1}")
        A(f"v_max_f32 v{mx}, v{mx}, v{Z+9}")
        A(f"v_min_f32 v{mn}, v{mn}, v{Z+9}")
        for reg, op in ((mx, "v_max_f32"), (mn, "v_min_f32")):
            A(f"v_mov_b32 v{t1}, v{reg}")
            A(f"v_permlane32_swap_b32 v{reg}, v{t1}")
            A(f"{op} v{reg}, v{reg}, v{t1}")
        A(f"v_mul_f32 v{mx}, s57, v{mx}")
        A(f"v_mul_f32 v{mn}, s57, v{mn}")
        for r in range(10):
            A(f"v_fma_f32 v{EP+r}, v{Z+r}, s57, -v{mx}")
            A(f"v_fma_f32 v{EN+r}, -v{Z+r}, s57, v{mn}")
        for r in range(10):
            A(f"v_exp_f32 v{EP+r}, v{EP+r}")
            A(f"v_exp_f32 v{EN+r}, v{EN+r}")
        if side == "k":
            for E_, sreg in ((EP, X+3), (EN, X+4)):
                A(f"v_add_f32 v{sreg}, v{E_}, v{E_+1}")
                for r in range(2, 10):
                    A(f"v_add_f32 v{sreg}, v{sreg}, v{E_+r}")
                A(f"v_mov_b32 v{t1}, v{sreg}")
                A(f"v_permlane32_swap_b32 v{sreg}, v{t1}")
                A(f"v_add_f32 v{sreg}, v{sreg}, v{t1}")
                A(f"v_rcp_f32 v{sreg}, v{sreg}")
                for r in range(10):
                    A(f"v_mul_f32 v{E_+r}, v{E_+r}, v{sreg}")
        for si, E_ in enumerate((EP, EN)):
            for i in range(5):
                A(f"v_cvt_pk_bf16_f32 v{PK+6*si+i}, v{E_+2*i}, v{E_+2*i+1}")
            A(f"v_mov_b32 v{PK+6*si+5}, 0")
        if side == "q":
            A("s_mul_i32 s59, s8, 2560")
            A(f"s_add_u32 s59, s59, {LDS_E}")
            A(f"v_lshlrev_b32 v{t1}, 2, v1")
            A(f"v_add_u32 v{t1}, s59, v{t1}")
            for si in range(2):
                for i in range(5):
                    A(f"ds_write_b32 v{t1}, v{PK+6*si+i} offset:{(si*5+i)*256}")
        else:
            A(f"v_lshlrev_b32 v{t1}, 6, v2")
            A(f"v_lshl_add_u32 v{t1}, v3, 3, v{t1}")
            A(f"v_add_u32 v{t1}, s58, v{t1}")
            for si in range(2):
                for aa in range(3):
                    A(f"ds_write_b64 v{t1}, {vr(PK+6*si+2*aa,2)} offset:{si*2048+aa*16}")
    A(f"v_bfe_u32 v{X+5}, v1, 2, 2")
    A(f"v_lshl_add_u32 v{X+5}, v3, 2, v{X+5}")
    A(f"v_lshlrev_b32 v{X+5}, 6, v{X+5}")
    A(f"v_bfe_u32 v{X+6}, v1, 4, 1")
    A(f"v_lshl_add_u32 v{X+5}, v{X+6}, 5, v{X+5}")
    A(f"v_and_b32 v{X+6}, 3, v1")
    A(f"v_lshl_add_u32 v{X+5}, v{X+6}, 3, v{X+5}")
    A(f"v_add_u32 v{X+5}, s58, v{X+5}")
    A("s_waitcnt lgkmcnt(0)")
    VFa = 160; BF = 172
    for si in range(2):
        for c in range(2):
            for u in range(2):
                A(f"ds_read_b64_tr_b16 {vr(BF+8*si+4*c+2*u,2)}, v{X+5} offset:{si*2048+(16*c+8*u)*64}")
    A("s_waitcnt lgkmcnt(0)")
    for si in range(2):
        acc = vr(GB[si], 16)
        A(f"v_mfma_f32_32x32x16_bf16 {acc}, {vr(VFa,4)}, {vr(BF+8*si,4)}, 0")
        A(f"v_mfma_f32_32x32x16_bf16 {acc}, {vr(VFa+4,4)}, {vr(BF+8*si+4,4)}, {acc}")
    A(f"v_lshlrev_b32 v{X}, 2, v1")
    A(f"v_add_u32 v{X}, s58, v{X}")
    for si in range(2):
        for r in range(12):
            A(f"ds_write_b32 v{X}, v{GB[si]+r} offset:{(si*12+r)*256}")
    a.fence()

def gen_reduce_publish(a, ctx):
    A = a.emit; vr = ctx["vr"]; T = ctx["T"]; vm = ctx["vm"]; LDS_W = ctx["LDS_W"]
    X = T
    A(f"v_lshlrev_b32 v{X}, 2, v1")
    A("s_mul_i32 s57, s8, 768")
    A(f"s_add_u32 s57, s57, {LDS_W}")
    A(f"v_add_u32 v{X+1}, s57, v{X}")
    B = 148
    for i in range(3):
        for w in range(8):
            A(f"ds_read_b32 v{B+i*8+w}, v{X+1} offset:{w*6144+i*256}")
    A("s_waitcnt lgkmcnt(0)")
    for i in range(3):
        for w in range(1, 8):
            A(f"v_add_f32 v{B+i*8}, v{B+i*8}, v{B+i*8+w}")
    A("s_lshl_b32 s54, s9, 3")
    A("s_add_u32 s54, s54, s10")
    A("s_lshl_b32 s54, s54, 13")
    A(f"s_add_u32 s54, s54, {KVSUM}")
    A("s_mul_i32 s55, s8, 768")
    A("s_add_u32 s54, s54, s55")
    A("s_cmp_ge_u32 s8, 4")
    A("s_cselect_b32 s55, 1024, 0")
    A("s_add_u32 s54, s54, s55")
    for i in range(3):
        vm.issue(f"buffer_store_dword v{B+i*8}, v{X}, s[4:7], s54 offen offset:{i*256} sc0 sc1", "pub")

def gen_signal_pre(a, ctx):
    ctx["vm"].wait("pub")

def gen_signal(a, ctx):
    A = a.emit; T = ctx["T"]; vm = ctx["vm"]; name = ctx["name"]
    A("s_cmp_lg_u32 s8, 0")
    A(f"s_cbranch_scc1 L_{name}_nosig")
    A("s_lshl_b32 s54, s9, 7")
    A("s_lshl_b32 s55, s10, 2")
    A("s_add_u32 s54, s54, s55")
    A(f"s_add_u32 s54, s54, {FLAGS}")
    A(f"v_mov_b32 v{T}, 0")
    A(f"v_mov_b32 v{T+1}, 1")
    A("s_mov_b64 exec, 1")
    A(f"buffer_store_dword v{T+1}, v{T}, s[4:7], s54 offen sc0 sc1")
    A("s_mov_b64 exec, -1")
    a.label(f"L_{name}_nosig")

def gen_linb_prefetch(a, ctx, final=False):
    A = a.emit; vr = ctx["vr"]; T = ctx["T"]; vm = ctx["vm"]; name = ctx["name"]; GB = ctx["GB"]
    X = T
    sfx = "f" if final else "p"
    if final:
        A("s_cmp_lg_u32 s56, 0")
        A(f"s_cbranch_scc1 L_{name}_pdone{sfx}")
    A("s_lshl_b32 s54, s9, 7")
    A(f"s_add_u32 s54, s54, {FLAGS}")
    A(f"v_and_b32 v{X}, 7, v1")
    A(f"v_lshlrev_b32 v{X}, 2, v{X}")
    a.label(f"L_{name}_poll{sfx}")
    A(f"buffer_load_dword v{X+1}, v{X}, s[4:7], s54 offen sc0 sc1")
    A("s_waitcnt vmcnt(0)")
    vm.q = []
    A(f"v_cmp_ne_u32 vcc, 1, v{X+1}")
    A("s_mov_b32 s56, 0")
    A("s_cmp_eq_u64 vcc, 0")
    if final:
        A(f"s_cbranch_scc1 L_{name}_polled{sfx}")
        A("s_sleep 32")
        A(f"s_branch L_{name}_poll{sfx}")
    else:
        A(f"s_cbranch_scc0 L_{name}_pdone{sfx}")
    a.label(f"L_{name}_polled{sfx}")
    A("s_mov_b32 s56, 1")
    A(f"v_lshlrev_b32 v{X}, 4, v0")
    A("s_lshl_b32 s54, s9, 16")
    A(f"s_add_u32 s54, s54, {KVSUM}")
    for p in range(8):
        A(f"s_add_u32 s55, s54, {p*8192}")
        A(f"buffer_load_dwordx4 {vr(GB[0]+4*p,4)}, v{X}, s[4:7], s55 offen sc0 sc1")
    a.label(f"L_{name}_pdone{sfx}")

def store_o(a, ctx, PK, which):
    A = a.emit; vr = ctx["vr"]; T = ctx["T"]; vRow = ctx["vRow"]
    X = T + 4
    A(f"v_lshrrev_b32 v{X}, 4, v{vRow}")
    A("s_mov_b32 s27, 40960")
    A(f"v_mul_lo_u32 v{X}, v{X}, s27")
    A(f"v_and_b32 v{X+1}, 15, v{vRow}")
    A(f"v_lshlrev_b32 v{X+1}, 4, v{X+1}")
    A(f"v_add_u32 v{X}, v{X}, v{X+1}")
    A("s_mul_i32 s28, s9, 5")
    if which: A("s_add_u32 s28, s28, 160")
    def qoff(dst, q):
        A(f"s_lshr_b32 {dst}, {q}, 3")
        A(f"s_lshl_b32 {dst}, {dst}, 10")
        A(f"s_and_b32 s33, {q}, 7")
        A(f"s_lshr_b32 s33, s33, 1")
        A(f"s_lshl_b32 s33, s33, 8")
        A(f"s_add_u32 {dst}, {dst}, s33")
        A(f"s_and_b32 s33, {q}, 1")
        A(f"s_lshl_b32 s33, s33, 3")
        A(f"s_add_u32 {dst}, {dst}, s33")
    A(f"s_mov_b32 s34, {OCAT}")
    for aa in range(3):
        A(f"s_add_u32 s29, s28, {2*aa}")
        qoff("s30", "s29")
        A("s_add_u32 s29, s29, 1")
        qoff("s31", "s29")
        A(f"v_mov_b32 v{X+1}, s30")
        A(f"v_mov_b32 v{X+2}, s31")
        A(f"v_cndmask_b32 v{X+1}, v{X+1}, v{X+2}, s[16:17]")
        A(f"v_add_u32 v{X+1}, v{X+1}, v{X}")
        if aa == 2: A("s_mov_b32 exec_hi, 0")
        A(f"buffer_store_dwordx2 {vr(PK+2*aa,2)}, v{X+1}, s[4:7], s34 offen")
        if aa == 2: A("s_mov_b32 exec_hi, -1")

def gen_linb_final(a, ctx):
    A = a.emit; vr = ctx["vr"]; T = ctx["T"]; GB = ctx["GB"]; vG = ctx["vG"]; LDS_W = ctx["LDS_W"]; LDS_E = ctx["LDS_E"]
    X = T
    SUM = LDS_W + 49152
    gen_linb_prefetch(a, ctx, final=True)
    A("s_waitcnt vmcnt(0)")
    G0 = GB[0]
    for i in range(4):
        for p in range(1, 8):
            A(f"v_add_f32 v{G0+i}, v{G0+i}, v{G0+4*p+i}")
    A(f"v_lshlrev_b32 v{X}, 4, v0")
    A(f"v_add_u32 v{X}, {SUM}, v{X}")
    A(f"ds_write_b128 v{X}, {vr(G0,4)}")
    A("s_mul_i32 s59, s8, 2560")
    A(f"s_add_u32 s59, s59, {LDS_E}")
    A(f"v_lshlrev_b32 v{X+2}, 2, v1")
    A(f"v_add_u32 v{X+2}, s59, v{X+2}")
    E = 88
    for si in range(2):
        for i in range(5):
            A(f"ds_read_b32 v{E+6*si+i}, v{X+2} offset:{(si*5+i)*256}")
        A(f"v_mov_b32 v{E+6*si+5}, 0")
    A("s_waitcnt lgkmcnt(0)")
    A("s_barrier")
    A(f"v_lshrrev_b32 v{X+3}, 3, v2")
    A(f"v_and_b32 v{X+4}, 3, v2")
    A(f"v_lshl_add_u32 v{X+3}, v{X+3}, 2, v{X+4}")
    A(f"v_lshlrev_b32 v{X+3}, 8, v{X+3}")
    A(f"v_bfe_u32 v{X+4}, v2, 2, 1")
    A(f"v_lshl_add_u32 v{X+3}, v{X+4}, 7, v{X+3}")
    A(f"v_lshl_add_u32 v{X+3}, v3, 4, v{X+3}")
    A(f"v_add_u32 v{X+3}, {SUM}, v{X+3}")
    F = 100
    for si in range(2):
        for aa in range(3):
            A(f"ds_read_b128 {vr(F+(si*3+aa)*4,4)}, v{X+3} offset:{si*4096+aa*32}")
    A("v_cmp_eq_u32 vcc, 21, v2")
    A("s_waitcnt lgkmcnt(0)")
    for i in range(24):
        A(f"v_cndmask_b32 v{F+i}, v{F+i}, 1.0, vcc")
    AF = 124
    for j in range(6):
        A(f"v_cvt_pk_bf16_f32 v{AF+2*j}, v{F+4*j}, v{F+4*j+1}")
        A(f"v_cvt_pk_bf16_f32 v{AF+2*j+1}, v{F+4*j+2}, v{F+4*j+3}")
    NP, NN = 16, 32
    for si, ACC in enumerate((NP, NN)):
        for aa in range(3):
            c = "0" if aa == 0 else vr(ACC,16)
            A(f"v_mfma_f32_32x32x8bf16_1k {vr(ACC,16)}, {vr(AF+2*(si*3+aa),2)}, {vr(E+6*si+2*aa,2)}, {c}")
    t = X
    for k, src in enumerate((NP+8, NP+9, NN+8, NN+9)):
        A(f"v_mov_b32 v{t+2*k}, v{src}")
        A(f"v_mov_b32 v{t+2*k+1}, v{src}")
        A(f"v_permlane32_swap_b32 v{t+2*k}, v{t+2*k+1}")
    dP, sP, dN, sN = t+1, t+3, t+5, t+7
    A(f"v_rcp_f32 v{sP}, v{sP}")
    A(f"v_rcp_f32 v{sN}, v{sN}")
    A(f"v_mul_f32 v{dP}, v{dP}, v{sP}")
    A(f"v_fma_f32 v{dP}, v{dN}, v{sN}, v{dP}")
    A(f"v_add_f32 v{dP}, 0x358637bd, v{dP}")
    A(f"v_rcp_f32 v{dP}, v{dP}")
    A(f"v_sub_f32 v{dN}, 1.0, v{vG}")
    A(f"v_mul_f32 v{dP}, v{dP}, v{dN}")
    A(f"v_mul_f32 v{sP}, v{sP}, v{dP}")
    A(f"v_mul_f32 v{sN}, v{sN}, v{dP}")
    for r in range(12):
        A(f"v_mul_f32 v{NP+r}, v{NP+r}, v{sP}")
        A(f"v_fma_f32 v{NP+r}, v{NN+r}, v{sN}, v{NP+r}")
    PK = 48
    for i in range(6):
        A(f"v_cvt_pk_bf16_f32 v{PK+i}, v{NP+2*i}, v{NP+2*i+1}")
    store_o(a, ctx, PK, 1)
```

```python
from dsl import Asm
from layout import *

def gen_k3(name="out_kernel"):
    a = Asm(); A = a.emit
    def vr(b, n): return f"v[{b}:{b+n-1}]"
    a.raw(f".globl {name}\n.p2align 8\n.type {name},@function\n{name}:")
    if TRACE: a.trace_begin()
    A("s_load_dwordx2 s[4:5], s[0:1], 80")
    A("s_load_dwordx2 s[12:13], s[0:1], 64")
    A("v_and_b32 v1, 63, v0")
    A("v_lshrrev_b32 v3, 6, v0")
    A("v_readfirstlane_b32 s8, v3")
    from jobs import emit_jobpick
    emit_jobpick(a, name, 32, 143360)
    A("s_cmp_ge_u32 s63, 32")
    A(f"s_cbranch_scc1 L_{name}_exit")
    A("s_lshl_b32 s9, s62, 2")
    A("s_lshr_b32 s10, s63, 3")
    A("s_add_u32 s9, s9, s10")
    A("s_and_b32 s10, s63, 7")
    A("s_mov_b32 s6, 0x10000000")
    A("s_mov_b32 s7, 0x00020000")
    A(f"s_mov_b32 s14, {2048*1280}")
    A("s_mov_b32 s15, 0x00020000")
    A("v_lshlrev_b32 v2, 4, v1")
    A("s_mul_i32 s16, s9, 163840")
    A("s_mul_i32 s17, s8, 5120")
    A("s_add_u32 s16, s16, s17")
    A(f"s_add_u32 s16, s16, {OCAT}")
    A("s_mul_i32 s18, s10, 204800")
    A("s_add_u32 s18, s18, s17")
    A(f"s_add_u32 s18, s18, {WOT}")
    FA = 96; FB = 176
    ACC = 16
    def fa(ks, rt): return 96 + (ks % 4) * 36 + rt * 4
    def fb(ks, nt): return 96 + (ks % 4) * 36 + 16 + nt * 4
    def loads(ks):
        for rt in range(4):
            A(f"s_add_u32 s20, s16, {rt*40960 + ks*1024}")
            A(f"buffer_load_dwordx4 {vr(fa(ks,rt),4)}, v2, s[4:7], s20 offen")
        for nt in range(5):
            A(f"s_add_u32 s20, s18, {nt*40960 + ks*1024}")
            A(f"buffer_load_dwordx4 {vr(fb(ks,nt),4)}, v2, s[4:7], s20 offen")
    for ks in range(4): loads(ks)
    def mm(ks):
        for rt in range(4):
            for nt in range(5):
                acc = vr(ACC + (rt*5+nt)*4, 4)
                c = "0" if ks == 0 else acc
                A(f"v_mfma_f32_16x16x32_bf16 {acc}, {vr(fb(ks,nt),4)}, {vr(fa(ks,rt),4)}, {c}")
    A("s_waitcnt vmcnt(27)")
    mm(0)
    loads(4)
    A("s_waitcnt vmcnt(27)")
    mm(1)
    A("s_waitcnt vmcnt(18)")
    mm(2)
    A("s_waitcnt vmcnt(9)")
    mm(3)
    A("s_waitcnt vmcnt(0)")
    mm(4)
    a.fence()
    A("s_mov_b32 s21, 0")
    for t in range(20):
        own = t % 8
        A(f"s_cmp_eq_u32 s8, {own}")
        A(f"s_cbranch_scc1 L_{name}_skipw{t}")
        A(f"s_cmp_gt_u32 s8, {own}")
        A("s_cselect_b32 s22, 1, 0")
        A("s_sub_u32 s22, s8, s22")
        A("s_lshl_b32 s22, s22, 10")
        A(f"v_add_u32 v4, s22, v2")
        A(f"ds_write_b128 v4, {vr(ACC+4*t,4)} offset:{(t*7168) % 65536}" if t*7168 < 65536 - 1024*7 else f"v_add_u32 v4, {t*7168}, v4\n ds_write_b128 v4, {vr(ACC+4*t,4)}")
        a.label(f"L_{name}_skipw{t}")
    A("s_waitcnt lgkmcnt(0)")
    A("s_barrier")
    A("s_mul_i32 s22, s8, 7168")
    A("v_add_u32 v4, s22, v2")
    for i in range(3):
        if i == 2:
            A("s_cmp_ge_u32 s8, 4")
            A(f"s_cbranch_scc1 L_{name}_end")
        if i > 0:
            A(f"v_add_u32 v4, {8*7168}, v4")
        for sidx in range(7):
            A(f"ds_read_b128 {vr(96+4*sidx,4)}, v4 offset:{sidx*1024}")
        for w in range(8):
            t = w + 8*i
            if t >= 20: continue
            A(f"s_cmp_lg_u32 s8, {w}")
            A(f"s_cbranch_scc1 L_{name}_sel{i}_{w}")
            for r in range(4):
                A(f"v_mov_b32 v{128+r}, v{ACC+4*t+r}")
            a.label(f"L_{name}_sel{i}_{w}")
        A("s_waitcnt lgkmcnt(0)")
        for sidx in range(7):
            for r in range(4):
                A(f"v_add_f32 v{128+r}, v{128+r}, v{96+4*sidx+r}")
        A("v_cvt_pk_bf16_f32 v132, v128, v129")
        A("v_cvt_pk_bf16_f32 v133, v130, v131")
        A(f"s_add_u32 s23, s8, {8*i}")
        A("s_mul_i32 s24, s23, 52")
        A("s_lshr_b32 s24, s24, 8")
        A("s_mul_i32 s25, s24, 5")
        A("s_sub_u32 s25, s23, s25")
        A("s_lshl_b32 s26, s9, 6")
        A("s_lshl_b32 s24, s24, 4")
        A("s_add_u32 s26, s26, s24")
        A("s_mul_i32 s26, s26, 1280")
        A("s_mul_i32 s27, s10, 160")
        A("s_lshl_b32 s25, s25, 5")
        A("s_add_u32 s26, s26, s27")
        A("s_add_u32 s26, s26, s25")
        A("v_and_b32 v5, 15, v1")
        A("v_mul_u32_u24 v5, 1280, v5")
        A("v_lshrrev_b32 v6, 4, v1")
        A("v_lshl_add_u32 v5, v6, 3, v5")
        A("buffer_store_dwordx2 v[132:133], v5, s[12:15], s26 offen")
        a.fence()
    a.label(f"L_{name}_end")
    if TRACE: a.trace_end(2)
    a.label(f"L_{name}_exit")
    A("s_endpgm")
    desc = f""".section .rodata,"a"
.p2align 6
.amdhsa_kernel {name}
  .amdhsa_next_free_vgpr 240
  .amdhsa_next_free_sgpr 96
  .amdhsa_accum_offset 240
  .amdhsa_group_segment_fixed_size 0
  .amdhsa_kernarg_size 88
  .amdhsa_user_sgpr_count 2
  .amdhsa_user_sgpr_kernarg_segment_ptr 1
  .amdhsa_system_sgpr_workgroup_id_x 1
.end_amdhsa_kernel
.text
"""
    return a.text(), desc, a.nops
```

```python
QIMG   = 0x0000000
KVIMG  = 0x0300000
GATE   = 0x0900000
OCAT   = 0x0A00000
QIMGB  = 0x1000000
KVIMGB = 0x1300000
KVSUM  = 0x1900000
WOT    = 0x1C00000
FLAGS  = 0x1B00000
WS_BYTES = 268435456
NAME = "gated_mix__softmax_full_mha__linear_kernel_hedgehog__prompt"
import os
TRACE = bool(os.environ.get('TRACE'))
PROF1 = bool(os.environ.get('PROF1'))
PROF2 = bool(os.environ.get('PROF2'))
```

```python
import sys
from k1 import gen_k1_full, K1_LDS
from k2 import gen_k2, LDS_TOTAL
from k3 import gen_k3, K3_LDS
from build import build
t1, d1, _ = gen_k1_full("proj_kernel")
t2, d2, n2 = gen_k2("att_kernel")
t3, d3, _ = gen_k3("out_kernel")
build([(t1, d1), (t2, d2), (t3, d3)],
      [("proj_kernel", 256, 768, K1_LDS), ("att_kernel", 256, 512, LDS_TOTAL), ("out_kernel", 256, 256, K3_LDS)],
      sys.argv[1])
print("k2 nops", n2)
```

```python
from dsl import Asm
from layout import *
import math, struct

QSCALE = struct.unpack("<I", struct.pack("<f", (20 ** -0.5) * math.log2(math.e)))[0]
NB = 3; NST = 10; STB = 49152
K1_LDS = NB * STB
STF = os.environ.get('STF', '')

def gen_k1_full(name="proj_kernel"):
    a = Asm(); A = a.emit
    def vr(b, n): return f"v[{b}:{b+n-1}]"
    ACC = 64
    FX = [16, 24]; FW = [32, 40]
    XO = [[128+4*g+k for k in range(4)] for g in range(3)]
    WO = [[54, 55], [56, 57], [58, 59]]
    DX = list(range(16, 24)); DW = list(range(24, 28))
    T = 4
    a.raw(f".globl {name}\n.p2align 8\n.type {name},@function\n{name}:")
    if TRACE: a.trace_begin()
    A("s_cmp_ge_u32 s2, 256")
    A(f"s_cbranch_scc1 L_{name}_exit")
    if PROF1: A("s_memtime s[72:73]")
    A("s_load_dwordx4 s[20:23], s[0:1], 0")
    A("s_load_dwordx2 s[26:27], s[0:1], 32")
    A("s_load_dwordx2 s[4:5], s[0:1], 80")
    A("v_and_b32 v1, 63, v0")
    A("v_lshrrev_b32 v2, 6, v0")
    A("v_readfirstlane_b32 s8, v2")
    A("s_and_b32 s62, s2, 7")
    A("s_lshr_b32 s63, s2, 3")
    A("s_lshr_b32 s9, s62, 2")
    A("s_bfe_u32 s10, s62, 0x10001")
    A("s_bitcmp1_b32 s62, 0")
    A(f"s_cbranch_scc1 L_{name}_h1")
    A("s_lshr_b32 s11, s63, 3")
    A("s_and_b32 s12, s63, 7")
    A(f"s_branch L_{name}_hd")
    a.label(f"L_{name}_h1")
    A("s_cmp_ge_u32 s63, 28")
    A(f"s_cbranch_scc1 L_{name}_aux")
    A("s_mul_i32 s11, s63, 9363")
    A("s_lshr_b32 s11, s11, 16")
    A("s_mul_i32 s12, s11, 7")
    A("s_sub_u32 s12, s63, s12")
    A("s_add_u32 s12, s12, 8")
    a.label(f"L_{name}_hd")
    A("s_lshl_b32 s10, s10, 2")
    A("s_add_u32 s11, s11, s10")
    A("s_and_b32 s13, s8, 3")
    A("s_bfe_u32 s14, s8, 0x10002")
    A("s_waitcnt lgkmcnt(0)")
    A("s_mov_b32 s28, s20"); A("s_mov_b32 s29, s21")
    A(f"s_mov_b32 s30, {2048*1280}"); A("s_mov_b32 s31, 0x00020000")
    A("s_cmp_eq_u32 s9, 0")
    A("s_cselect_b32 s32, s22, s26"); A("s_cselect_b32 s33, s23, s27")
    A(f"s_mov_b32 s34, {640*3840}"); A("s_mov_b32 s35, 0x00020000")
    A("s_mov_b32 s6, 0x10000000"); A("s_mov_b32 s7, 0x00020000")
    A("s_cmp_lt_u32 s8, 8")
    A(f"s_cbranch_scc1 L_{name}_compute")
    A("s_sub_u32 s15, s8, 8")
    A(f"v_lshrrev_b32 v{T}, 3, v1")
    A(f"v_lshrrev_b32 v{T+1}, 4, v1")
    A(f"v_and_b32 v{T+2}, 7, v1")
    A("s_lshl_b32 s16, s11, 8")
    A("s_lshl_b32 s17, s15, 6")
    A("s_add_u32 s16, s16, s17")
    A(f"v_add_u32 v{T}, s16, v{T}")
    A("s_movk_i32 s17, 1280")
    A(f"v_mul_lo_u32 v{T}, v{T}, s17")
    for p in range(8):
        A(f"v_add_u32 v{T+3}, {4*(p%2)}, v{T+1}")
        A(f"v_xor_b32 v{T+3}, v{T+2}, v{T+3}")
        A(f"v_lshl_add_u32 v{DX[p]}, v{T+3}, 4, v{T}")
        if p: A(f"v_add_u32 v{DX[p]}, {p*8*1280}, v{DX[p]}")
    A(f"v_and_b32 v{T+2}, 15, v1")
    A(f"v_lshlrev_b32 v{T+3}, 2, v{T+1}")
    A(f"v_xor_b32 v{T+2}, v{T+2}, v{T+3}")
    A(f"v_lshlrev_b32 v{T+2}, 4, v{T+2}")
    A("s_lshl_b32 s16, s15, 4")
    A(f"v_add_u32 v{T+1}, s16, v{T+1}")
    A("s_movk_i32 s17, 3840")
    A(f"v_mul_lo_u32 v{T+1}, v{T+1}, s17")
    A("s_lshl_b32 s16, s12, 8")
    A(f"v_add3_u32 v{DW[0]}, v{T+1}, v{T+2}, s16")
    for p in range(1, 4):
        A(f"v_add_u32 v{DW[p]}, {p*4*3840}, v{DW[0]}")
    A("s_lshl_b32 s18, s15, 13")
    A("s_lshl_b32 s19, s15, 12")
    A("s_add_u32 s19, s19, 32768")
    def dma(st):
        base = (st % NB) * STB
        A(f"s_movk_i32 s36, {st*128}")
        A(f"s_mov_b32 s37, {st*64*3840}")
        for p in range(8):
            A(f"s_add_u32 m0, s18, {base+p*1024}")
            A("s_nop 0")
            if not os.environ.get('NOXD'): A(f"buffer_load_dwordx4 v{DX[p]}, s[28:31], s36 offen lds")
        for p in range(4):
            A(f"s_add_u32 m0, s19, {base+p*1024}")
            A("s_nop 0")
            if not os.environ.get('NOWD'): A(f"buffer_load_dwordx4 v{DW[p]}, s[32:35], s37 offen lds")
    issued = []
    NPS = 12 - (8 if os.environ.get('NOXD') else 0) - (4 if os.environ.get('NOWD') else 0)
    def iss(st):
        dma(st); issued.append(st)
    iss(0); iss(1)
    if os.environ.get('LDOLD'): iss(2)
    for st in range(NST):
        A(f"s_waitcnt vmcnt({NPS*(issued[-1]-st)})")
        A("s_barrier")
        if st == 0 and not os.environ.get('LDOLD'): iss(2)
        if st >= 2 and st - 2 + NB < NST:
            iss(st - 2 + NB)
    A(f"s_branch L_{name}_exit")
    a.label(f"L_{name}_compute")
    A(f"v_and_b32 v{T}, 31, v1")
    A(f"v_lshrrev_b32 v{T+1}, 5, v1")
    A(f"v_bfe_u32 v{T+2}, v1, 1, 3")
    A(f"v_xor_b32 v{T+2}, v{T+2}, v{T+1}")
    A(f"v_lshlrev_b32 v{T+3}, 7, v{T}")
    A("s_lshl_b32 s16, s13, 13")
    A(f"v_add_u32 v{T+3}, s16, v{T+3}")
    A(f"v_lshl_add_u32 v{T+3}, v{T+2}, 4, v{T+3}")
    for k in range(4):
        A(f"v_xor_b32 v{XO[0][k]}, {k<<5}, v{T+3}")
    A(f"v_bfe_u32 v{T}, v1, 4, 1")
    A(f"v_bfe_u32 v{T+2}, v1, 2, 2")
    A(f"v_and_b32 v{T+3}, 3, v1")
    A(f"v_lshlrev_b32 v{T+4}, 3, v{T+1}")
    A(f"v_add_u32 v{T+4}, v{T+4}, v{T+2}")
    A(f"v_lshlrev_b32 v{T+4}, 8, v{T+4}")
    A(f"v_add_u32 v{T+4}, 32768, v{T+4}")
    A(f"v_lshlrev_b32 v{T+5}, 1, v{T}")
    A(f"v_lshrrev_b32 v{T+6}, 1, v{T+3}")
    A(f"v_add_u32 v{T+5}, v{T+5}, v{T+6}")
    A(f"v_lshl_add_u32 v{T+4}, v{T+5}, 4, v{T+4}")
    A(f"v_and_b32 v{T+6}, 1, v{T+3}")
    A(f"v_lshl_add_u32 v{T+4}, v{T+6}, 3, v{T+4}")
    A(f"v_lshlrev_b32 v{T+2}, 2, v{T+2}")
    A("s_lshl_b32 s16, s14, 3")
    for ct in range(2):
        A(f"s_add_u32 s17, s16, {4*ct}")
        A(f"v_xor_b32 v{T+5}, s17, v{T+2}")
        A(f"v_lshl_add_u32 v{WO[0][ct]}, v{T+5}, 4, v{T+4}")
    for g in (1, 2):
        for i in range(4):
            A(f"v_add_u32 v{XO[g][i]}, {g*STB}, v{XO[0][i]}")
        for i in range(2):
            A(f"v_add_u32 v{WO[g][i]}, {g*STB}, v{WO[0][i]}")
    for r in range(64):
        A(f"v_mov_b32 v{ACC+r}, 0")
    A("s_cmp_ge_u32 s12, 10")
    A(f"s_cbranch_scc1 L_{name}_v")

    def reads(st, ks, setid):
        if os.environ.get('NOCOMP'): return
        g = st % NB
        for rt in range(2):
            A(f"ds_read_b128 {vr(FX[setid]+4*rt,4)}, v{XO[g][ks]} offset:{rt*4096}")
        for ct in range(2):
            for u in range(2):
                A(f"ds_read_b64_tr_b16 {vr(FW[setid]+4*ct+2*u,2)}, v{WO[g][ct]} offset:{(16*ks+4*u)*256}")
    def mfmas(setid, vtype):
        if os.environ.get('NOCOMP'): return
        for i in range(2):
            for j in range(2):
                acc = vr(ACC + (i*2+j)*16, 16)
                if vtype:
                    A(f"v_mfma_f32_32x32x16_bf16 {acc}, {vr(FX[setid]+4*i,4)}, {vr(FW[setid]+4*j,4)}, {acc}")
                else:
                    A(f"v_mfma_f32_32x32x16_bf16 {acc}, {vr(FW[setid]+4*i,4)}, {vr(FX[setid]+4*j,4)}, {acc}")
    def mainloop(vtype):
        A("s_barrier")
        if PROF1: A("s_memtime s[74:75]")
        reads(0, 0, 0)
        for st in range(NST):
            if PROF1 and st == 5: A("s_memtime s[76:77]")
            for ks in range(4):
                cur = ks & 1; nxt = 1 - cur
                if ks < 3:
                    reads(st, ks + 1, nxt)
                    A("s_waitcnt lgkmcnt(6)")
                elif st + 1 < NST:
                    A("s_barrier")
                    reads(st + 1, 0, nxt)
                    A("s_waitcnt lgkmcnt(6)")
                else:
                    A("s_waitcnt lgkmcnt(0)")
                mfmas(cur, vtype)
    mainloop(False)
    if PROF1: A("s_memtime s[78:79]")
    a.fence()
    A("v_cmp_lt_u32 s[40:41], 31, v1")
    A("s_cmp_lt_u32 s12, 5")
    a.csel("s42", 64*1536, 64*3072, "s60")
    a.csel("s43", 1536, 3072, "s60")
    A(f"s_cselect_b32 s44, {QIMG}, {KVIMG}")
    a.csel("s45", QIMGB, KVIMGB, "s60")
    A("s_cselect_b32 s46, 0, 5")
    A(f"s_cselect_b32 s47, {QSCALE}, 1.0")
    A("s_cmp_eq_u32 s9, 0")
    A("s_cselect_b32 s44, s44, s45")
    A("s_cselect_b32 s47, s47, 1.0")
    A("s_sub_u32 s46, s12, s46")
    A("s_lshl_b32 s46, s46, 5")
    A("s_lshl_b32 s48, s14, 4")
    A("s_add_u32 s46, s46, s48")
    A("s_lshl_b32 s48, s11, 3")
    A("s_lshl_b32 s49, s13, 1")
    A("s_add_u32 s48, s48, s49")
    A("s_mul_i32 s48, s48, s43")
    A("s_add_u32 s44, s44, s48")
    A("s_add_u32 s57, s44, s43")
    A(f"v_and_b32 v{T}, 31, v1")
    A(f"v_lshlrev_b32 v{T}, 4, v{T}")
    for r in range(64):
        A(f"v_mul_f32 v{ACC+r}, s47, v{ACC+r}")
    def qoff(dst, q):
        A(f"s_mul_hi_u32 s50, {q}, s52")
        A("s_lshr_b32 s50, s50, 2")
        A("s_mul_i32 s51, s50, 5")
        A(f"s_sub_u32 s51, {q}, s51")
        A(f"s_mul_i32 {dst}, s50, s42")
        A("s_lshr_b32 s53, s51, 1")
        A("s_lshl_b32 s53, s53, 9")
        A(f"s_add_u32 {dst}, {dst}, s53")
        A("s_and_b32 s53, s51, 1")
        A("s_lshl_b32 s53, s53, 3")
        A(f"s_add_u32 {dst}, {dst}, s53")
    A("s_mov_b32 s52, 0xcccccccd")
    A("v_mov_b32 v12, 0x3f80")
    A("v_mov_b32 v13, 0")
    for ct in range(2):
        for aa in range(4):
            A(f"s_add_u32 s54, s46, {8*ct+2*aa}")
            qoff("s55", "s54")
            A("s_mov_b32 s58, s51")
            A("s_add_u32 s54, s54, 1")
            qoff("s56", "s54")
            A("s_mov_b32 s59, s51")
            A(f"v_mov_b32 v{T+1}, s55")
            A(f"v_mov_b32 v{T+2}, s56")
            A(f"v_cndmask_b32 v{T+1}, v{T+1}, v{T+2}, s[40:41]")
            A(f"v_add_u32 v{T+1}, v{T+1}, v{T}")
            for rt in range(2):
                b = ACC + (ct*2+rt)*16 + 4*aa
                P = 16 + 2*((ct*8+aa*2+rt) % 8)
                A(f"v_cvt_pk_bf16_f32 v{P}, v{b}, v{b+1}")
                A(f"v_cvt_pk_bf16_f32 v{P+1}, v{b+2}, v{b+3}")
                A(f"buffer_store_dwordx2 {vr(P,2)}, v{T+1}, s[4:7], {'s57' if rt else 's44'} offen{STF}")
            lbl = f"L_{name}_kc{ct}{aa}"
            A("s_cmp_lt_u32 s12, 5")
            A(f"s_cbranch_scc1 {lbl}")
            A("s_cmp_eq_u32 s58, 4")
            A("s_cselect_b32 s60, -1, 0")
            A("s_cmp_eq_u32 s59, 4")
            A("s_cselect_b32 s61, -1, 0")
            A("s_or_b32 s49, s60, s61")
            A("s_cmp_eq_u32 s49, 0")
            A(f"s_cbranch_scc1 {lbl}")
            A("s_mov_b64 exec, s[60:61]")
            A(f"buffer_store_dwordx2 v[12:13], v{T+1}, s[4:7], s44 offen offset:8{STF}")
            A(f"buffer_store_dwordx2 v[12:13], v{T+1}, s[4:7], s57 offen offset:8{STF}")
            A("s_mov_b64 exec, -1")
            a.label(lbl)
    A(f"s_branch L_{name}_end")
    a.label(f"L_{name}_v")
    a.fence()
    mainloop(True)
    if PROF1: A("s_memtime s[78:79]")
    a.fence()
    A("s_cmp_eq_u32 s9, 0")
    a.csel("s44", KVIMG, KVIMGB, "s60")
    A("s_lshl_b32 s48, s11, 3")
    A("s_lshl_b32 s49, s13, 1")
    A("s_add_u32 s48, s48, s49")
    A("s_mul_i32 s48, s48, 3072")
    A("s_add_u32 s44, s44, s48")
    A("s_add_u32 s44, s44, 1536")
    A("s_sub_u32 s46, s12, 10")
    A("s_lshl_b32 s46, s46, 7")
    A("s_lshl_b32 s48, s14, 6")
    A("s_add_u32 s46, s46, s48")
    A(f"v_and_b32 v{T}, 31, v1")
    A(f"v_lshrrev_b32 v{T+1}, 5, v1")
    A(f"v_mul_u32_u24 v{T+1}, 384, v{T+1}")
    A("s_mov_b32 s50, 52429")
    A(f"s_mov_b32 s51, {64*3072}")
    for ct in range(2):
        A(f"s_add_u32 s48, s46, {32*ct}")
        A(f"v_add_u32 v{T+2}, s48, v{T}")
        A(f"v_mul_u32_u24 v{T+3}, s50, v{T+2}")
        A(f"v_lshrrev_b32 v{T+3}, 20, v{T+3}")
        A(f"v_mul_u32_u24 v{T+4}, 20, v{T+3}")
        A(f"v_sub_u32 v{T+4}, v{T+2}, v{T+4}")
        A(f"v_mul_lo_u32 v{T+3}, v{T+3}, s51")
        A(f"v_lshl_add_u32 v{T+3}, v{T+4}, 4, v{T+3}")
        A(f"v_add_u32 v{T+3}, v{T+3}, v{T+1}")
        A(f"v_cmp_lt_u32 s[60:61], 15, v{T+4}")
        A(f"v_cmp_eq_u32 vcc, 16, v{T+4}")
        A(f"v_mov_b32 v{T+5}, 0x3f803f80")
        for i in range(4):
            A(f"v_cndmask_b32 v{32+i}, 0, v{T+5}, vcc")
        for rt in range(2):
            for cc in range(2):
                b = ACC + (rt*2+ct)*16 + 8*cc
                P = 16 + 4*((ct*4+rt*2+cc) % 4)
                for i in range(4):
                    A(f"v_cvt_pk_bf16_f32 v{P+i}, v{b+2*i}, v{b+2*i+1}")
                A(f"s_add_u32 s57, s44, {rt*3072+cc*768}")
                A(f"buffer_store_dwordx4 {vr(P,4)}, v{T+3}, s[4:7], s57 offen{STF}")
                A("s_mov_b64 exec, s[60:61]")
                A(f"buffer_store_dwordx4 v[32:35], v{T+3}, s[4:7], s57 offen offset:64{STF}")
                A("s_mov_b64 exec, -1")
    A(f"s_branch L_{name}_end")
    a.label(f"L_{name}_aux")
    a.fence()
    A("s_cmp_lt_u32 s8, 4")
    A(f"s_cbranch_scc1 L_{name}_aux2")
    A("s_barrier")
    A(f"s_branch L_{name}_exit")
    a.label(f"L_{name}_aux2")
    from k1aux import gen_aux
    gen_aux(a, name)
    a.label(f"L_{name}_end")
    if PROF1:
        A("s_memtime s[80:81]")
        A("s_waitcnt vmcnt(0)")
        A("s_memtime s[82:83]")
        A("s_waitcnt lgkmcnt(0)")
        for i, r in enumerate((72, 74, 76, 78, 80, 82)):
            A(f"v_mov_b32 v{16+i}, s{r}")
        A("s_lshl_b32 s84, s2, 3")
        A("s_add_u32 s84, s84, s8")
        A("s_lshl_b32 s84, s84, 5")
        A("s_add_u32 s84, s84, 0x8000000")
        A("v_mov_b32 v24, 0")
        A("s_mov_b64 exec, 1")
        A("buffer_store_dwordx4 v[16:19], v24, s[4:7], s84 offen")
        A("buffer_store_dwordx2 v[20:21], v24, s[4:7], s84 offen offset:16")
    if TRACE: a.trace_end(0)
    a.label(f"L_{name}_exit")
    A("s_endpgm")
    desc = f""".section .rodata,"a"
.p2align 6
.amdhsa_kernel {name}
  .amdhsa_next_free_vgpr 168
  .amdhsa_next_free_sgpr 102
  .amdhsa_accum_offset 168
  .amdhsa_group_segment_fixed_size 0
  .amdhsa_kernarg_size 88
  .amdhsa_user_sgpr_count 2
  .amdhsa_user_sgpr_kernarg_segment_ptr 1
  .amdhsa_system_sgpr_workgroup_id_x 1
.end_amdhsa_kernel
.text
"""
    return a.text(), desc, a.nops
```

```python
from layout import *
LOG2E = 0x3fb8aa3b

def fm_preload(a, ctx):
    A = a.emit; vm = ctx["vm"]; T = ctx["T"]; name = ctx["name"]
    A("s_cmp_lg_u32 s8, 0")
    A(f"s_cbranch_scc1 L_{name}_nowp")
    A(f"s_mov_b32 m0, {ctx['LDS_WA'] + 3072}")
    A(f"v_lshlrev_b32 v{T}, 4, v1")
    A(f"buffer_load_dwordx4 v{T}, s[44:47], 0 offen lds")
    a.label(f"L_{name}_nowp")

def fm_pack(a, ctx):
    A = a.emit; T = ctx["T"]; name = ctx["name"]
    X = T
    A("s_cmp_lg_u32 s8, 0")
    A(f"s_cbranch_scc1 L_{name}_nopk")
    A(f"v_subrev_u32 v{X}, 2, v2")
    A(f"v_cmp_gt_u32 vcc, 18, v2")
    A(f"v_cndmask_b32 v{X}, v{X}, v2, vcc")
    A(f"v_subrev_u32 v{X+1}, 18, v2")
    A(f"v_cmp_gt_u32 vcc, 2, v{X+1}")
    A(f"v_cmp_lt_u32 s[58:59], 21, v2")
    A("s_or_b64 s[58:59], vcc, s[58:59]")
    A(f"v_cndmask_b32 v{X}, v{X}, 0, s[58:59]")
    A(f"v_lshlrev_b32 v{X}, 1, v{X}")
    A(f"v_add_u32 v{X}, {ctx['LDS_WA'] + 3072}, v{X}")
    A(f"v_mul_u32_u24 v{X+2}, 320, v3")
    A(f"v_add_u32 v{X+2}, v{X+2}, v{X}")
    A("s_or_b64 s[60:61], s[58:59], s[16:17]")
    A(f"v_lshlrev_b32 v{X+4}, 2, v1")
    A(f"v_add_u32 v{X+4}, {ctx['LDS_WA']}, v{X+4}")
    R0 = 172
    for t in range(8):
        A(f"ds_read_u16 v{R0+t}, v{X+2} offset:{t*40}")
    A("s_waitcnt lgkmcnt(0)")
    for i in range(4):
        A(f"v_lshl_or_b32 v{R0+8+i}, v{R0+2*i+1}, 16, v{R0+2*i}")
        A(f"v_cndmask_b32 v{R0+8+i}, v{R0+8+i}, 0, s[58:59]")
        A(f"ds_write_b32 v{X+4}, v{R0+8+i} offset:{i*256}")
    for t in range(4):
        A(f"ds_read_u16 v{R0+t}, v{X} offset:{640+t*40}")
    A("s_waitcnt lgkmcnt(0)")
    for i in range(2):
        A(f"v_lshl_or_b32 v{R0+8+i}, v{R0+2*i+1}, 16, v{R0+2*i}")
        A(f"v_cndmask_b32 v{R0+8+i}, v{R0+8+i}, 0, s[60:61]")
        A(f"ds_write_b32 v{X+4}, v{R0+8+i} offset:{(4+i)*256}")
    a.label(f"L_{name}_nopk")

def fm_loads(a, ctx):
    A = a.emit; vr = ctx["vr"]; vm = ctx["vm"]; lK1 = ctx["lK1"]; lK2 = ctx["lK2"]; lV = ctx["lV"]
    A("s_lshl_b32 s54, s9, 6")
    A("s_add_u32 s54, s54, s19")
    A("s_mul_i32 s55, s54, 1536")
    A(f"s_add_u32 s55, s55, {QIMGB}")
    A("s_mul_i32 s56, s54, 3072")
    A(f"s_add_u32 s56, s56, {KVIMGB}")
    vm.issue(f"buffer_load_dwordx4 {vr(148,4)}, v{lK1}, s[4:7], s55 offen", "fm")
    vm.issue(f"buffer_load_dwordx2 {vr(152,2)}, v{lK2}, s[4:7], s55 offen", "fm")
    vm.issue(f"buffer_load_dwordx4 {vr(154,4)}, v{lK1}, s[4:7], s56 offen", "fm")
    vm.issue(f"buffer_load_dwordx2 {vr(158,2)}, v{lK2}, s[4:7], s56 offen", "fm")
    vm.issue(f"buffer_load_dwordx4 {vr(160,4)}, v{lV}, s[4:7], s56 offen", "fm")
    vm.issue(f"buffer_load_dwordx4 {vr(164,4)}, v{lV}, s[4:7], s56 offen offset:768", "fm")

def gen_fm2(a, ctx):
    A = a.emit; vr = ctx["vr"]; GB = ctx["GB"]; T = ctx["T"]; vm = ctx["vm"]; name = ctx["name"]
    LDS_W = ctx["LDS_W"]; LDS_E = ctx["LDS_E"]
    a.fence()
    vm.wait("fm")
    WA = 168
    A(f"v_lshlrev_b32 v{T}, 2, v1")
    A(f"v_add_u32 v{T}, {ctx['LDS_WA']}, v{T}")
    for i in range(6):
        A(f"ds_read_b32 v{WA+i}, v{T} offset:{i*256}")
    A(f"v_cndmask_b32 v152, v152, 0, s[16:17]")
    A(f"v_cndmask_b32 v153, v153, 0, s[16:17]")
    A("s_waitcnt lgkmcnt(0)")
    Z = 224; EP = GB[0]; EN = GB[1]
    X = T
    A(f"s_mov_b32 s57, {LOG2E}")
    A("s_mul_i32 s58, s8, 6144")
    A(f"s_add_u32 s58, s58, {LDS_W}")
    PK = 240
    for side in ("q", "k"):
        B1, B2 = (148, 152) if side == "q" else (154, 158)
        A(f"v_mfma_f32_32x32x16_bf16 {vr(Z,16)}, {vr(WA,4)}, {vr(B1,4)}, 0")
        A(f"v_mfma_f32_32x32x8bf16_1k {vr(Z,16)}, {vr(WA+4,2)}, {vr(B2,2)}, {vr(Z,16)}")
        mx, mn, t1 = X, X+1, X+2
        A(f"v_max3_f32 v{mx}, v{Z}, v{Z+1}, v{Z+2}")
        A(f"v_min3_f32 v{mn}, v{Z}, v{Z+1}, v{Z+2}")
        for r in (3, 5, 7):
            A(f"v_max3_f32 v{mx}, v{mx}, v{Z+r}, v{Z+r+1}")
            A(f"v_min3_f32 v{mn}, v{mn}, v{Z+r}, v{Z+r+1}")
        A(f"v_max_f32 v{mx}, v{mx}, v{Z+9}")
        A(f"v_min_f32 v{mn}, v{mn}, v{Z+9}")
        for reg, op in ((mx, "v_max_f32"), (mn, "v_min_f32")):
            A(f"v_mov_b32 v{t1}, v{reg}")
            A(f"v_permlane32_swap_b32 v{reg}, v{t1}")
            A(f"{op} v{reg}, v{reg}, v{t1}")
        A(f"v_mul_f32 v{mx}, s57, v{mx}")
        A(f"v_mul_f32 v{mn}, s57, v{mn}")
        for r in range(10):
            A(f"v_fma_f32 v{EP+r}, v{Z+r}, s57, -v{mx}")
            A(f"v_fma_f32 v{EN+r}, -v{Z+r}, s57, v{mn}")
        for r in range(10):
            A(f"v_exp_f32 v{EP+r}, v{EP+r}")
            A(f"v_exp_f32 v{EN+r}, v{EN+r}")
        if side == "k":
            for E_, sreg in ((EP, X+3), (EN, X+4)):
                A(f"v_add_f32 v{sreg}, v{E_}, v{E_+1}")
                for r in range(2, 10):
                    A(f"v_add_f32 v{sreg}, v{sreg}, v{E_+r}")
                A(f"v_mov_b32 v{t1}, v{sreg}")
                A(f"v_permlane32_swap_b32 v{sreg}, v{t1}")
                A(f"v_add_f32 v{sreg}, v{sreg}, v{t1}")
                A(f"v_rcp_f32 v{sreg}, v{sreg}")
                for r in range(10):
                    A(f"v_mul_f32 v{E_+r}, v{E_+r}, v{sreg}")
        for si, E_ in enumerate((EP, EN)):
            for i in range(5):
                A(f"v_cvt_pk_bf16_f32 v{PK+6*si+i}, v{E_+2*i}, v{E_+2*i+1}")
            A(f"v_mov_b32 v{PK+6*si+5}, 0")
        if side == "q":
            A("s_mul_i32 s59, s8, 2560")
            A(f"s_add_u32 s59, s59, {LDS_E}")
            A(f"v_lshlrev_b32 v{t1}, 2, v1")
            A(f"v_add_u32 v{t1}, s59, v{t1}")
            for si in range(2):
                for i in range(5):
                    A(f"ds_write_b32 v{t1}, v{PK+6*si+i} offset:{(si*5+i)*256}")
        else:
            A(f"v_lshlrev_b32 v{t1}, 6, v2")
            A(f"v_lshl_add_u32 v{t1}, v3, 3, v{t1}")
            A(f"v_add_u32 v{t1}, s58, v{t1}")
            for si in range(2):
                for aa in range(3):
                    A(f"ds_write_b64 v{t1}, {vr(PK+6*si+2*aa,2)} offset:{si*2048+aa*16}")
    A(f"v_bfe_u32 v{X+5}, v1, 2, 2")
    A(f"v_lshl_add_u32 v{X+5}, v3, 2, v{X+5}")
    A(f"v_lshlrev_b32 v{X+5}, 6, v{X+5}")
    A(f"v_bfe_u32 v{X+6}, v1, 4, 1")
    A(f"v_lshl_add_u32 v{X+5}, v{X+6}, 5, v{X+5}")
    A(f"v_and_b32 v{X+6}, 3, v1")
    A(f"v_lshl_add_u32 v{X+5}, v{X+6}, 3, v{X+5}")
    A(f"v_add_u32 v{X+5}, s58, v{X+5}")
    A("s_waitcnt lgkmcnt(0)")
    VFa = 160; BF = 172
    for si in range(2):
        for c in range(2):
            for u in range(2):
                A(f"ds_read_b64_tr_b16 {vr(BF+8*si+4*c+2*u,2)}, v{X+5} offset:{si*2048+(16*c+8*u)*64}")
    A("s_waitcnt lgkmcnt(0)")
    for si in range(2):
        acc = vr(GB[si], 16)
        A(f"v_mfma_f32_32x32x16_bf16 {acc}, {vr(VFa,4)}, {vr(BF+8*si,4)}, 0")
        A(f"v_mfma_f32_32x32x16_bf16 {acc}, {vr(VFa+4,4)}, {vr(BF+8*si+4,4)}, {acc}")
    A(f"v_lshlrev_b32 v{X}, 2, v1")
    A(f"v_add_u32 v{X}, s58, v{X}")
    for si in range(2):
        for r in range(12):
            A(f"ds_write_b32 v{X}, v{GB[si]+r} offset:{(si*12+r)*256}")
    a.fence()

def gen_reduce_publish(a, ctx):
    A = a.emit; vr = ctx["vr"]; T = ctx["T"]; vm = ctx["vm"]; LDS_W = ctx["LDS_W"]
    X = T
    A(f"v_lshlrev_b32 v{X}, 2, v1")
    A("s_mul_i32 s57, s8, 768")
    A(f"s_add_u32 s57, s57, {LDS_W}")
    A(f"v_add_u32 v{X+1}, s57, v{X}")
    B = 148
    for i in range(3):
        for w in range(8):
            A(f"ds_read_b32 v{B+i*8+w}, v{X+1} offset:{w*6144+i*256}")
    A("s_waitcnt lgkmcnt(0)")
    for i in range(3):
        for w in range(1, 8):
            A(f"v_add_f32 v{B+i*8}, v{B+i*8}, v{B+i*8+w}")
    A("s_lshl_b32 s54, s9, 3")
    A("s_add_u32 s54, s54, s10")
    A("s_lshl_b32 s54, s54, 13")
    A(f"s_add_u32 s54, s54, {KVSUM}")
    A("s_mul_i32 s55, s8, 768")
    A("s_add_u32 s54, s54, s55")
    A("s_cmp_ge_u32 s8, 4")
    A("s_cselect_b32 s55, 1024, 0")
    A("s_add_u32 s54, s54, s55")
    for i in range(3):
        vm.issue(f"buffer_store_dword v{B+i*8}, v{X}, s[4:7], s54 offen offset:{i*256} sc0 sc1", "pub")

def gen_signal_pre(a, ctx):
    ctx["vm"].wait("pub")

def gen_signal(a, ctx):
    A = a.emit; T = ctx["T"]; vm = ctx["vm"]; name = ctx["name"]
    A("s_cmp_lg_u32 s8, 0")
    A(f"s_cbranch_scc1 L_{name}_nosig")
    A("s_lshl_b32 s54, s9, 7")
    A("s_lshl_b32 s55, s10, 2")
    A("s_add_u32 s54, s54, s55")
    A(f"s_add_u32 s54, s54, {FLAGS}")
    A(f"v_mov_b32 v{T}, 0")
    A(f"v_mov_b32 v{T+1}, 1")
    A("s_mov_b64 exec, 1")
    A(f"buffer_store_dword v{T+1}, v{T}, s[4:7], s54 offen sc0 sc1")
    A("s_mov_b64 exec, -1")
    a.label(f"L_{name}_nosig")

def gen_linb_prefetch(a, ctx, final=False):
    A = a.emit; vr = ctx["vr"]; T = ctx["T"]; vm = ctx["vm"]; name = ctx["name"]; GB = ctx["GB"]
    X = T
    sfx = "f" if final else "p"
    if final:
        A("s_cmp_lg_u32 s56, 0")
        A(f"s_cbranch_scc1 L_{name}_pdone{sfx}")
    A("s_lshl_b32 s54, s9, 7")
    A(f"s_add_u32 s54, s54, {FLAGS}")
    A(f"v_and_b32 v{X}, 7, v1")
    A(f"v_lshlrev_b32 v{X}, 2, v{X}")
    a.label(f"L_{name}_poll{sfx}")
    A(f"buffer_load_dword v{X+1}, v{X}, s[4:7], s54 offen sc0 sc1")
    A("s_waitcnt vmcnt(0)")
    vm.q = []
    A(f"v_cmp_ne_u32 vcc, 1, v{X+1}")
    A("s_mov_b32 s56, 0")
    A("s_cmp_eq_u64 vcc, 0")
    if final:
        A(f"s_cbranch_scc1 L_{name}_polled{sfx}")
        A("s_sleep 32")
        A(f"s_branch L_{name}_poll{sfx}")
    else:
        A(f"s_cbranch_scc0 L_{name}_pdone{sfx}")
    a.label(f"L_{name}_polled{sfx}")
    A("s_mov_b32 s56, 1")
    A(f"v_lshlrev_b32 v{X}, 4, v0")
    A("s_lshl_b32 s54, s9, 16")
    A(f"s_add_u32 s54, s54, {KVSUM}")
    for p in range(8):
        A(f"s_add_u32 s55, s54, {p*8192}")
        A(f"buffer_load_dwordx4 {vr(GB[0]+4*p,4)}, v{X}, s[4:7], s55 offen sc0 sc1")
    a.label(f"L_{name}_pdone{sfx}")

def store_o(a, ctx, PK, which):
    A = a.emit; vr = ctx["vr"]; T = ctx["T"]; vRow = ctx["vRow"]
    X = T + 4
    A(f"v_lshrrev_b32 v{X}, 4, v{vRow}")
    A("s_mov_b32 s27, 40960")
    A(f"v_mul_lo_u32 v{X}, v{X}, s27")
    A(f"v_and_b32 v{X+1}, 15, v{vRow}")
    A(f"v_lshlrev_b32 v{X+1}, 4, v{X+1}")
    A(f"v_add_u32 v{X}, v{X}, v{X+1}")
    A("s_mul_i32 s28, s9, 5")
    if which: A("s_add_u32 s28, s28, 160")
    def qoff(dst, q):
        A(f"s_lshr_b32 {dst}, {q}, 3")
        A(f"s_lshl_b32 {dst}, {dst}, 10")
        A(f"s_and_b32 s33, {q}, 7")
        A(f"s_lshr_b32 s33, s33, 1")
        A(f"s_lshl_b32 s33, s33, 8")
        A(f"s_add_u32 {dst}, {dst}, s33")
        A(f"s_and_b32 s33, {q}, 1")
        A(f"s_lshl_b32 s33, s33, 3")
        A(f"s_add_u32 {dst}, {dst}, s33")
    A(f"s_mov_b32 s34, {OCAT}")
    for aa in range(3):
        A(f"s_add_u32 s29, s28, {2*aa}")
        qoff("s30", "s29")
        A("s_add_u32 s29, s29, 1")
        qoff("s31", "s29")
        A(f"v_mov_b32 v{X+1}, s30")
        A(f"v_mov_b32 v{X+2}, s31")
        A(f"v_cndmask_b32 v{X+1}, v{X+1}, v{X+2}, s[16:17]")
        A(f"v_add_u32 v{X+1}, v{X+1}, v{X}")
        if aa == 2: A("s_mov_b32 exec_hi, 0")
        A(f"buffer_store_dwordx2 {vr(PK+2*aa,2)}, v{X+1}, s[4:7], s34 offen")
        if aa == 2: A("s_mov_b32 exec_hi, -1")

def gen_linb_sum(a, ctx):
    A = a.emit; vr = ctx["vr"]; T = ctx["T"]; GB = ctx["GB"]; LDS_W = ctx["LDS_W"]
    X = T + 4
    SUM = LDS_W + 49152
    a.fence()
    gen_linb_prefetch(a, dict(ctx, T=X), final=True)
    A("s_waitcnt vmcnt(0)")
    G0 = GB[0]
    for i in range(4):
        for p in range(1, 8):
            A(f"v_add_f32 v{G0+i}, v{G0+i}, v{G0+4*p+i}")
    A(f"v_lshlrev_b32 v{X}, 4, v0")
    A(f"v_add_u32 v{X}, {SUM}, v{X}")
    A(f"ds_write_b128 v{X}, {vr(G0,4)}")

def gen_linb_final(a, ctx):
    A = a.emit; vr = ctx["vr"]; T = ctx["T"]; GB = ctx["GB"]; vG = ctx["vG"]; LDS_W = ctx["LDS_W"]; LDS_E = ctx["LDS_E"]
    X = T
    SUM = LDS_W + 49152
    A("s_mul_i32 s59, s8, 2560")
    A(f"s_add_u32 s59, s59, {LDS_E}")
    A(f"v_lshlrev_b32 v{X+2}, 2, v1")
    A(f"v_add_u32 v{X+2}, s59, v{X+2}")
    E = 88
    for si in range(2):
        for i in range(5):
            A(f"ds_read_b32 v{E+6*si+i}, v{X+2} offset:{(si*5+i)*256}")
        A(f"v_mov_b32 v{E+6*si+5}, 0")
    A(f"v_lshrrev_b32 v{X+3}, 3, v2")
    A(f"v_and_b32 v{X+4}, 3, v2")
    A(f"v_lshl_add_u32 v{X+3}, v{X+3}, 2, v{X+4}")
    A(f"v_lshlrev_b32 v{X+3}, 8, v{X+3}")
    A(f"v_bfe_u32 v{X+4}, v2, 2, 1")
    A(f"v_lshl_add_u32 v{X+3}, v{X+4}, 7, v{X+3}")
    A(f"v_lshl_add_u32 v{X+3}, v3, 4, v{X+3}")
    A(f"v_add_u32 v{X+3}, {SUM}, v{X+3}")
    F = 100
    for si in range(2):
        for aa in range(3):
            A(f"ds_read_b128 {vr(F+(si*3+aa)*4,4)}, v{X+3} offset:{si*4096+aa*32}")
    A("v_cmp_eq_u32 vcc, 21, v2")
    A("s_waitcnt lgkmcnt(0)")
    for i in range(24):
        A(f"v_cndmask_b32 v{F+i}, v{F+i}, 1.0, vcc")
    AF = 124
    for j in range(6):
        A(f"v_cvt_pk_bf16_f32 v{AF+2*j}, v{F+4*j}, v{F+4*j+1}")
        A(f"v_cvt_pk_bf16_f32 v{AF+2*j+1}, v{F+4*j+2}, v{F+4*j+3}")
    NP, NN = 16, 32
    for si, ACC in enumerate((NP, NN)):
        for aa in range(3):
            c = "0" if aa == 0 else vr(ACC,16)
            A(f"v_mfma_f32_32x32x8bf16_1k {vr(ACC,16)}, {vr(AF+2*(si*3+aa),2)}, {vr(E+6*si+2*aa,2)}, {c}")
    t = X
    for k, src in enumerate((NP+8, NP+9, NN+8, NN+9)):
        A(f"v_mov_b32 v{t+2*k}, v{src}")
        A(f"v_mov_b32 v{t+2*k+1}, v{src}")
        A(f"v_permlane32_swap_b32 v{t+2*k}, v{t+2*k+1}")
    dP, sP, dN, sN = t+1, t+3, t+5, t+7
    A(f"v_rcp_f32 v{sP}, v{sP}")
    A(f"v_rcp_f32 v{sN}, v{sN}")
    A(f"v_mul_f32 v{dP}, v{dP}, v{sP}")
    A(f"v_fma_f32 v{dP}, v{dN}, v{sN}, v{dP}")
    A(f"v_add_f32 v{dP}, 0x358637bd, v{dP}")
    A(f"v_rcp_f32 v{dP}, v{dP}")
    A(f"v_sub_f32 v{dN}, 1.0, v{vG}")
    A(f"v_mul_f32 v{dP}, v{dP}, v{dN}")
    A(f"v_mul_f32 v{sP}, v{sP}, v{dP}")
    A(f"v_mul_f32 v{sN}, v{sN}, v{dP}")
    for r in range(12):
        A(f"v_mul_f32 v{NP+r}, v{NP+r}, v{sP}")
        A(f"v_fma_f32 v{NP+r}, v{NN+r}, v{sN}, v{NP+r}")
    PK = 48
    for i in range(6):
        A(f"v_cvt_pk_bf16_f32 v{PK+i}, v{NP+2*i}, v{NP+2*i+1}")
    store_o(a, ctx, PK, 1)
```

```python
from dsl import Asm
from layout import *
K3_LDS = 20 * 3 * 1024

def gen_k3(name="out_kernel"):
    a = Asm(); A = a.emit
    def vr(b, n): return f"v[{b}:{b+n-1}]"
    a.raw(f".globl {name}\n.p2align 8\n.type {name},@function\n{name}:")
    if TRACE: a.trace_begin()
    A("s_cmp_ge_u32 s2, 256")
    A(f"s_cbranch_scc1 L_{name}_exit")
    A("s_load_dwordx2 s[4:5], s[0:1], 80")
    A("s_load_dwordx2 s[12:13], s[0:1], 64")
    A("v_and_b32 v1, 63, v0")
    A("v_lshrrev_b32 v3, 6, v0")
    A("v_readfirstlane_b32 s8, v3")
    A("s_and_b32 s62, s2, 7")
    A("s_lshr_b32 s63, s2, 3")
    A("s_lshl_b32 s9, s62, 2")
    A("s_lshr_b32 s10, s63, 3")
    A("s_add_u32 s9, s9, s10")
    A("s_and_b32 s10, s63, 7")
    A("v_lshlrev_b32 v2, 4, v1")
    A("s_mul_i32 s16, s9, 163840")
    A("s_mul_i32 s17, s8, 10240")
    A("s_add_u32 s16, s16, s17")
    A(f"s_add_u32 s16, s16, {OCAT}")
    A("s_mul_i32 s18, s10, 204800")
    A("s_add_u32 s18, s18, s17")
    A(f"s_add_u32 s18, s18, {WOT}")
    A("s_waitcnt lgkmcnt(0)")
    A("s_mov_b32 s6, 0x10000000"); A("s_mov_b32 s7, 0x00020000")
    A(f"s_mov_b32 s14, {2048*1280}"); A("s_mov_b32 s15, 0x00020000")
    ACC = 16; ND = 4
    def fa(ks, rt): return 96 + (ks % ND) * 36 + rt * 4
    def fb(ks, nt): return 96 + (ks % ND) * 36 + 16 + nt * 4
    def loads(ks):
        for rt in range(4):
            A(f"s_add_u32 s20, s16, {rt*40960 + ks*1024}")
            A(f"buffer_load_dwordx4 {vr(fa(ks,rt),4)}, v2, s[4:7], s20 offen")
        for nt in range(5):
            A(f"s_add_u32 s20, s18, {nt*40960 + ks*1024}")
            A(f"buffer_load_dwordx4 {vr(fb(ks,nt),4)}, v2, s[4:7], s20 offen")
    def mm(ks):
        for rt in range(4):
            for nt in range(5):
                acc = vr(ACC + (rt*5+nt)*4, 4)
                c = "0" if ks == 0 else acc
                A(f"v_mfma_f32_16x16x32_bf16 {acc}, {vr(fb(ks,nt),4)}, {vr(fa(ks,rt),4)}, {c}")
    NK = 10
    for ks in range(ND): loads(ks)
    for ks in range(NK):
        inflight = min(NK - 1, ks + ND - 1) - ks
        A(f"s_waitcnt vmcnt({9*inflight})")
        mm(ks)
        if ks + ND < NK: loads(ks + ND)
    a.fence()
    for t in range(20):
        own = t % 4
        A(f"s_cmp_eq_u32 s8, {own}")
        A(f"s_cbranch_scc1 L_{name}_skipw{t}")
        A(f"s_cmp_gt_u32 s8, {own}")
        A("s_cselect_b32 s22, 1, 0")
        A("s_sub_u32 s22, s8, s22")
        A("s_lshl_b32 s22, s22, 10")
        A(f"v_add_u32 v4, s22, v2")
        A(f"ds_write_b128 v4, {vr(ACC+4*t,4)} offset:{t*3072}")
        a.label(f"L_{name}_skipw{t}")
    A("s_waitcnt lgkmcnt(0)")
    A("s_barrier")
    A("s_mul_i32 s22, s8, 3072")
    A("v_add_u32 v4, s22, v2")
    A("v_and_b32 v5, 15, v1")
    A("v_mul_u32_u24 v5, 1280, v5")
    A("v_lshrrev_b32 v6, 4, v1")
    A("v_lshl_add_u32 v5, v6, 3, v5")
    for i in range(5):
        for sidx in range(3):
            A(f"ds_read_b128 {vr(96+12*i+4*sidx,4)}, v4 offset:{i*4*3072+sidx*1024}")
    for w in range(4):
        A(f"s_cmp_lg_u32 s8, {w}")
        A(f"s_cbranch_scc1 L_{name}_sel{w}")
        for i in range(5):
            for r in range(4):
                A(f"v_mov_b32 v{160+4*i+r}, v{ACC+4*(w+4*i)+r}")
        a.label(f"L_{name}_sel{w}")
    A("s_waitcnt lgkmcnt(0)")
    for i in range(5):
        for sidx in range(3):
            for r in range(4):
                A(f"v_add_f32 v{160+4*i+r}, v{160+4*i+r}, v{96+12*i+4*sidx+r}")
        A(f"v_cvt_pk_bf16_f32 v{184+2*i}, v{160+4*i}, v{161+4*i}")
        A(f"v_cvt_pk_bf16_f32 v{185+2*i}, v{162+4*i}, v{163+4*i}")
        A(f"s_add_u32 s23, s8, {4*i}")
        A("s_mul_i32 s24, s23, 52")
        A("s_lshr_b32 s24, s24, 8")
        A("s_mul_i32 s25, s24, 5")
        A("s_sub_u32 s25, s23, s25")
        A("s_lshl_b32 s26, s9, 6")
        A("s_lshl_b32 s24, s24, 4")
        A("s_add_u32 s26, s26, s24")
        A("s_mul_i32 s26, s26, 1280")
        A("s_mul_i32 s27, s10, 160")
        A("s_lshl_b32 s25, s25, 5")
        A("s_add_u32 s26, s26, s27")
        A("s_add_u32 s26, s26, s25")
        A(f"buffer_store_dwordx2 {vr(184+2*i,2)}, v5, s[12:15], s26 offen")
    a.label(f"L_{name}_end")
    if TRACE: a.trace_end(2)
    a.label(f"L_{name}_exit")
    A("s_endpgm")
    desc = f""".section .rodata,"a"
.p2align 6
.amdhsa_kernel {name}
  .amdhsa_next_free_vgpr 240
  .amdhsa_next_free_sgpr 100
  .amdhsa_accum_offset 240
  .amdhsa_group_segment_fixed_size 0
  .amdhsa_kernarg_size 88
  .amdhsa_user_sgpr_count 2
  .amdhsa_user_sgpr_kernarg_segment_ptr 1
  .amdhsa_system_sgpr_workgroup_id_x 1
.end_amdhsa_kernel
.text
"""
    return a.text(), desc, a.nops
```

```python
from dsl import Asm
from layout import *

def gen_k3(name="out_kernel"):
    a = Asm(); A = a.emit
    def vr(b, n): return f"v[{b}:{b+n-1}]"
    a.raw(f".globl {name}\n.p2align 8\n.type {name},@function\n{name}:")
    if TRACE: a.trace_begin()
    A("s_load_dwordx2 s[4:5], s[0:1], 80")
    if PROF1: A("s_memtime s[72:73]")
    A("s_load_dwordx2 s[12:13], s[0:1], 64")
    A("v_and_b32 v1, 63, v0")
    A("v_lshrrev_b32 v3, 6, v0")
    A("v_readfirstlane_b32 s8, v3")
    from jobs import emit_jobpick
    emit_jobpick(a, name, 32, 143360)
    A("s_cmp_ge_u32 s63, 32")
    A(f"s_cbranch_scc1 L_{name}_exit")
    A("s_lshl_b32 s9, s62, 2")
    A("s_lshr_b32 s10, s63, 3")
    A("s_add_u32 s9, s9, s10")
    A("s_and_b32 s10, s63, 7")
    A("s_mov_b32 s6, 0x10000000")
    A("s_mov_b32 s7, 0x00020000")
    A(f"s_mov_b32 s14, {2048*1280}")
    A("s_mov_b32 s15, 0x00020000")
    A("v_lshlrev_b32 v2, 4, v1")
    A("s_mul_i32 s16, s9, 163840")
    A("s_mul_i32 s17, s8, 5120")
    A("s_add_u32 s16, s16, s17")
    A(f"s_add_u32 s16, s16, {OCAT}")
    A("s_mul_i32 s18, s10, 204800")
    A("s_add_u32 s18, s18, s17")
    A(f"s_add_u32 s18, s18, {WOT}")
    FA = 96; FB = 176
    ACC = 16
    def fa(ks, rt): return 96 + (ks % 4) * 36 + rt * 4
    def fb(ks, nt): return 96 + (ks % 4) * 36 + 16 + nt * 4
    def loads(ks):
        for rt in range(4):
            A(f"s_add_u32 s20, s16, {rt*40960 + ks*1024}")
            A(f"buffer_load_dwordx4 {vr(fa(ks,rt),4)}, v2, s[4:7], s20 offen")
        for nt in range(5):
            A(f"s_add_u32 s20, s18, {nt*40960 + ks*1024}")
            A(f"buffer_load_dwordx4 {vr(fb(ks,nt),4)}, v2, s[4:7], s20 offen")
    for ks in range(4): loads(ks)
    def mm(ks):
        for rt in range(4):
            for nt in range(5):
                acc = vr(ACC + (rt*5+nt)*4, 4)
                c = "0" if ks == 0 else acc
                A(f"v_mfma_f32_16x16x32_bf16 {acc}, {vr(fb(ks,nt),4)}, {vr(fa(ks,rt),4)}, {c}")
    if PROF1: A("s_memtime s[74:75]")
    A("s_waitcnt vmcnt(27)")
    if PROF1: A("s_memtime s[76:77]")
    mm(0)
    loads(4)
    A("s_waitcnt vmcnt(27)")
    mm(1)
    A("s_waitcnt vmcnt(18)")
    mm(2)
    A("s_waitcnt vmcnt(9)")
    mm(3)
    A("s_waitcnt vmcnt(0)")
    mm(4)
    if PROF1: A("s_memtime s[78:79]")
    a.fence()
    A("s_mov_b32 s21, 0")
    for t in range(20):
        own = t % 8
        A(f"s_cmp_eq_u32 s8, {own}")
        A(f"s_cbranch_scc1 L_{name}_skipw{t}")
        A(f"s_cmp_gt_u32 s8, {own}")
        A("s_cselect_b32 s22, 1, 0")
        A("s_sub_u32 s22, s8, s22")
        A("s_lshl_b32 s22, s22, 10")
        A(f"v_add_u32 v4, s22, v2")
        A(f"ds_write_b128 v4, {vr(ACC+4*t,4)} offset:{(t*7168) % 65536}" if t*7168 < 65536 - 1024*7 else f"v_add_u32 v4, {t*7168}, v4\n ds_write_b128 v4, {vr(ACC+4*t,4)}")
        a.label(f"L_{name}_skipw{t}")
    A("s_waitcnt lgkmcnt(0)")
    A("s_barrier")
    if PROF1: A("s_memtime s[80:81]")
    A("s_mul_i32 s22, s8, 7168")
    A("v_add_u32 v4, s22, v2")
    for i in range(3):
        if i == 2:
            A("s_cmp_ge_u32 s8, 4")
            A(f"s_cbranch_scc1 L_{name}_end")
        if i > 0:
            A(f"v_add_u32 v4, {8*7168}, v4")
        for sidx in range(7):
            A(f"ds_read_b128 {vr(96+4*sidx,4)}, v4 offset:{sidx*1024}")
        for w in range(8):
            t = w + 8*i
            if t >= 20: continue
            A(f"s_cmp_lg_u32 s8, {w}")
            A(f"s_cbranch_scc1 L_{name}_sel{i}_{w}")
            for r in range(4):
                A(f"v_mov_b32 v{128+r}, v{ACC+4*t+r}")
            a.label(f"L_{name}_sel{i}_{w}")
        A("s_waitcnt lgkmcnt(0)")
        for sidx in range(7):
            for r in range(4):
                A(f"v_add_f32 v{128+r}, v{128+r}, v{96+4*sidx+r}")
        A("v_cvt_pk_bf16_f32 v132, v128, v129")
        A("v_cvt_pk_bf16_f32 v133, v130, v131")
        A(f"s_add_u32 s23, s8, {8*i}")
        A("s_mul_i32 s24, s23, 52")
        A("s_lshr_b32 s24, s24, 8")
        A("s_mul_i32 s25, s24, 5")
        A("s_sub_u32 s25, s23, s25")
        A("s_lshl_b32 s26, s9, 6")
        A("s_lshl_b32 s24, s24, 4")
        A("s_add_u32 s26, s26, s24")
        A("s_mul_i32 s26, s26, 1280")
        A("s_mul_i32 s27, s10, 160")
        A("s_lshl_b32 s25, s25, 5")
        A("s_add_u32 s26, s26, s27")
        A("s_add_u32 s26, s26, s25")
        A("v_and_b32 v5, 15, v1")
        A("v_mul_u32_u24 v5, 1280, v5")
        A("v_lshrrev_b32 v6, 4, v1")
        A("v_lshl_add_u32 v5, v6, 3, v5")
        A("buffer_store_dwordx2 v[132:133], v5, s[12:15], s26 offen")
        a.fence()
    a.label(f"L_{name}_end")
    if PROF1:
        A("s_memtime s[82:83]")
        A("s_waitcnt lgkmcnt(0)")
        for i, r in enumerate((72, 74, 76, 78, 80, 82)):
            A(f"v_mov_b32 v{16+i}, s{r}")
        A("s_lshl_b32 s84, s2, 3")
        A("s_add_u32 s84, s84, s8")
        A("s_lshl_b32 s84, s84, 5")
        A("s_add_u32 s84, s84, 0x8200000")
        A("v_mov_b32 v24, 0")
        A("s_mov_b64 exec, 1")
        A("buffer_store_dwordx4 v[16:19], v24, s[4:7], s84 offen")
        A("buffer_store_dwordx2 v[20:21], v24, s[4:7], s84 offen offset:16")
    if TRACE: a.trace_end(2)
    a.label(f"L_{name}_exit")
    A("s_endpgm")
    desc = f""".section .rodata,"a"
.p2align 6
.amdhsa_kernel {name}
  .amdhsa_next_free_vgpr 240
  .amdhsa_next_free_sgpr 96
  .amdhsa_accum_offset 240
  .amdhsa_group_segment_fixed_size 0
  .amdhsa_kernarg_size 88
  .amdhsa_user_sgpr_count 2
  .amdhsa_user_sgpr_kernarg_segment_ptr 1
  .amdhsa_system_sgpr_workgroup_id_x 1
.end_amdhsa_kernel
.text
"""
    return a.text(), desc, a.nops
```

```python
import sys
from k1 import gen_k1_full, K1_LDS
from k2 import gen_k2, LDS_TOTAL
import os
if os.environ.get('K3OLD'):
    from k3_8w import gen_k3
    K3_LDS = 143360+64; K3_BLK = 512
else:
    from k3 import gen_k3, K3_LDS
    K3_BLK = 256
from build import build
t1, d1, _ = gen_k1_full("proj_kernel")
t2, d2, n2 = gen_k2("att_kernel")
t3, d3, _ = gen_k3("out_kernel")
build([(t1, d1), (t2, d2), (t3, d3)],
      [("proj_kernel", 256, 768, K1_LDS), ("att_kernel", 256, 512, LDS_TOTAL), ("out_kernel", 256, K3_BLK, K3_LDS)],
      sys.argv[1])
print("k2 nops", n2)
```

```python
from dsl import Asm
from layout import *
import math, struct

QSCALE = struct.unpack("<I", struct.pack("<f", (20 ** -0.5) * math.log2(math.e)))[0]
NST = 10; NXB = 4; XB = 32768; NWB = 4; WB = 8192; WBASE = NXB * XB
K1_LDS = WBASE + NWB * WB
STF = os.environ.get('STF', '')

def gen_k1_full(name="proj_kernel"):
    a = Asm(); A = a.emit
    def vr(b, n): return f"v[{b}:{b+n-1}]"
    ACC = 64
    FX = [16, 24]; FW = [32, 40]
    XO = [[128+4*g+k for k in range(4)] for g in range(4)]
    WO = [54, 55]
    DX = list(range(16, 24)); DW = list(range(24, 28))
    T = 4
    a.raw(f".globl {name}\n.p2align 8\n.type {name},@function\n{name}:")
    if TRACE: a.trace_begin()
    A("s_cmp_ge_u32 s2, 256")
    A(f"s_cbranch_scc1 L_{name}_exit")
    if PROF1: A("s_memtime s[72:73]")
    A("s_load_dwordx4 s[20:23], s[0:1], 0")
    A("s_load_dwordx2 s[26:27], s[0:1], 32")
    A("s_load_dwordx2 s[4:5], s[0:1], 80")
    A("v_and_b32 v1, 63, v0")
    A("v_lshrrev_b32 v2, 6, v0")
    A("v_readfirstlane_b32 s8, v2")
    A("s_and_b32 s62, s2, 7")
    A("s_lshr_b32 s63, s2, 3")
    A("s_lshr_b32 s9, s62, 2")
    A("s_bfe_u32 s10, s62, 0x10001")
    A("s_bitcmp1_b32 s62, 0")
    A(f"s_cbranch_scc1 L_{name}_h1")
    A("s_lshr_b32 s11, s63, 3")
    A("s_and_b32 s12, s63, 7")
    A(f"s_branch L_{name}_hd")
    a.label(f"L_{name}_h1")
    A("s_cmp_ge_u32 s63, 28")
    A(f"s_cbranch_scc1 L_{name}_aux")
    A("s_mul_i32 s11, s63, 9363")
    A("s_lshr_b32 s11, s11, 16")
    A("s_mul_i32 s12, s11, 7")
    A("s_sub_u32 s12, s63, s12")
    A("s_add_u32 s12, s12, 8")
    a.label(f"L_{name}_hd")
    A("s_lshl_b32 s10, s10, 2")
    A("s_add_u32 s11, s11, s10")
    A("s_and_b32 s13, s8, 3")
    A("s_bfe_u32 s14, s8, 0x10002")
    A("s_waitcnt lgkmcnt(0)")
    A("s_mov_b32 s28, s20"); A("s_mov_b32 s29, s21")
    A(f"s_mov_b32 s30, {2048*1280}"); A("s_mov_b32 s31, 0x00020000")
    A("s_cmp_eq_u32 s9, 0")
    A("s_cselect_b32 s32, s22, s26"); A("s_cselect_b32 s33, s23, s27")
    A(f"s_mov_b32 s34, {640*3840}"); A("s_mov_b32 s35, 0x00020000")
    A("s_mov_b32 s6, 0x10000000"); A("s_mov_b32 s7, 0x00020000")
    A("s_cmp_lt_u32 s8, 8")
    A(f"s_cbranch_scc1 L_{name}_compute")
    A("s_sub_u32 s15, s8, 8")
    A(f"v_lshrrev_b32 v{T}, 3, v1")
    A(f"v_lshrrev_b32 v{T+1}, 4, v1")
    A(f"v_and_b32 v{T+2}, 7, v1")
    A("s_lshl_b32 s16, s11, 8")
    A("s_lshl_b32 s17, s15, 6")
    A("s_add_u32 s16, s16, s17")
    A(f"v_add_u32 v{T}, s16, v{T}")
    A("s_movk_i32 s17, 1280")
    A(f"v_mul_lo_u32 v{T}, v{T}, s17")
    for p in range(8):
        A(f"v_add_u32 v{T+3}, {4*(p%2)}, v{T+1}")
        A(f"v_xor_b32 v{T+3}, v{T+2}, v{T+3}")
        A(f"v_lshl_add_u32 v{DX[p]}, v{T+3}, 4, v{T}")
        if p: A(f"v_add_u32 v{DX[p]}, {p*8*1280}, v{DX[p]}")
    A(f"v_and_b32 v{T+2}, 15, v1")
    A(f"v_lshlrev_b32 v{T+3}, 2, v{T+1}")
    A(f"v_xor_b32 v{T+2}, v{T+2}, v{T+3}")
    A(f"v_lshlrev_b32 v{T+2}, 4, v{T+2}")
    A("s_lshl_b32 s16, s15, 3")
    A(f"v_add_u32 v{T+1}, s16, v{T+1}")
    A("s_movk_i32 s17, 3840")
    A(f"v_mul_lo_u32 v{T+1}, v{T+1}, s17")
    A("s_lshl_b32 s16, s12, 8")
    A(f"v_add3_u32 v{DW[0]}, v{T+1}, v{T+2}, s16")
    for p in range(1, 4):
        A(f"v_add_u32 v{DW[p]}, {p*4*3840}, v{DW[0]}")
    A("s_lshl_b32 s18, s15, 13")
    A("s_lshl_b32 s19, s15, 11")
    A(f"s_add_u32 s19, s19, {WBASE}")
    q = []
    def dmax(st):
        A(f"s_movk_i32 s36, {st*128}")
        for p in range(8):
            A(f"s_add_u32 m0, s18, {(st % NXB)*XB+p*1024}")
            A("s_nop 0")
            A(f"buffer_load_dwordx4 v{DX[p]}, s[28:31], s36 offen lds"); q.append(("x", st))
    def dmaw(h):
        A(f"s_mov_b32 s37, {h*32*3840}")
        for p in range(2):
            A(f"s_add_u32 m0, s19, {(h % NWB)*WB+p*1024}")
            A("s_nop 0")
            A(f"buffer_load_dwordx4 v{DW[p]}, s[32:35], s37 offen lds"); q.append(("w", h))
    def waitfor(tags):
        nonlocal q
        idx = max(i for i, t in enumerate(q) if t in tags)
        A(f"s_waitcnt vmcnt({len(q)-1-idx})")
        q = q[idx+1:]
    dmaw(0); dmax(0); dmaw(1); dmax(1); dmaw(2)
    NH = 2 * NST
    for h in range(NH):
        need = [("w", h)] + ([("x", h // 2)] if h % 2 == 0 else [])
        if any(t in q for t in need): waitfor(need)
        A("s_barrier")
        if h == 0: dmax(2)
        if h == 1: dmaw(3)
        if h >= 2:
            if h + 2 < NH: dmaw(h + 2)
            if h % 2 == 1 and (h - 1) // 2 >= 1:
                stx = (h - 3) // 2 + NXB
                if stx < NST: dmax(stx)
            if h == 2: dmax(3)
    A(f"s_branch L_{name}_exit")
    a.label(f"L_{name}_compute")
    A(f"v_and_b32 v{T}, 31, v1")
    A(f"v_lshrrev_b32 v{T+1}, 5, v1")
    A(f"v_bfe_u32 v{T+2}, v1, 1, 3")
    A(f"v_xor_b32 v{T+2}, v{T+2}, v{T+1}")
    A(f"v_lshlrev_b32 v{T+3}, 7, v{T}")
    A("s_lshl_b32 s16, s13, 13")
    A(f"v_add_u32 v{T+3}, s16, v{T+3}")
    A(f"v_lshl_add_u32 v{T+3}, v{T+2}, 4, v{T+3}")
    for k in range(4):
        A(f"v_xor_b32 v{XO[0][k]}, {k<<5}, v{T+3}")
    A(f"v_bfe_u32 v{T}, v1, 4, 1")
    A(f"v_bfe_u32 v{T+2}, v1, 2, 2")
    A(f"v_and_b32 v{T+3}, 3, v1")
    A(f"v_lshlrev_b32 v{T+4}, 3, v{T+1}")
    A(f"v_add_u32 v{T+4}, v{T+4}, v{T+2}")
    A(f"v_lshlrev_b32 v{T+4}, 8, v{T+4}")
    A(f"v_add_u32 v{T+4}, {WBASE}, v{T+4}")
    A(f"v_lshlrev_b32 v{T+5}, 1, v{T}")
    A(f"v_lshrrev_b32 v{T+6}, 1, v{T+3}")
    A(f"v_add_u32 v{T+5}, v{T+5}, v{T+6}")
    A(f"v_lshl_add_u32 v{T+4}, v{T+5}, 4, v{T+4}")
    A(f"v_and_b32 v{T+6}, 1, v{T+3}")
    A(f"v_lshl_add_u32 v{T+4}, v{T+6}, 3, v{T+4}")
    A(f"v_lshlrev_b32 v{T+2}, 2, v{T+2}")
    A("s_lshl_b32 s16, s14, 3")
    for ct in range(2):
        A(f"s_add_u32 s17, s16, {4*ct}")
        A(f"v_xor_b32 v{T+5}, s17, v{T+2}")
        A(f"v_lshl_add_u32 v{WO[ct]}, v{T+5}, 4, v{T+4}")
    for g in (1, 2, 3):
        for i in range(4):
            A(f"v_add_u32 v{XO[g][i]}, {g*XB}, v{XO[0][i]}")
    for r in range(64):
        A(f"v_mov_b32 v{ACC+r}, 0")
    A("s_cmp_ge_u32 s12, 10")
    A(f"s_cbranch_scc1 L_{name}_v")

    def reads(st, ks, setid):
        if os.environ.get('NOCOMP'): return
        g = st % NXB
        h = 2*st + ks // 2
        for rt in range(2):
            A(f"ds_read_b128 {vr(FX[setid]+4*rt,4)}, v{XO[g][ks]} offset:{rt*4096}")
        for ct in range(2):
            for u in range(2):
                A(f"ds_read_b64_tr_b16 {vr(FW[setid]+4*ct+2*u,2)}, v{WO[ct]} offset:{(h % NWB)*WB + (16*(ks%2)+4*u)*256}")
    def mfmas(setid, vtype):
        if os.environ.get('NOCOMP'): return
        for i in range(2):
            for j in range(2):
                acc = vr(ACC + (i*2+j)*16, 16)
                if vtype:
                    A(f"v_mfma_f32_32x32x16_bf16 {acc}, {vr(FX[setid]+4*i,4)}, {vr(FW[setid]+4*j,4)}, {acc}")
                else:
                    A(f"v_mfma_f32_32x32x16_bf16 {acc}, {vr(FW[setid]+4*i,4)}, {vr(FX[setid]+4*j,4)}, {acc}")
    def mainloop(vtype):
        A("s_barrier")
        if PROF1: A("s_memtime s[74:75]")
        reads(0, 0, 0)
        for st in range(NST):
            if PROF1 and st == 5: A("s_memtime s[76:77]")
            for ks in range(4):
                cur = ks & 1; nxt = 1 - cur
                if ks in (0, 2):
                    reads(st, ks + 1, nxt)
                    A("s_waitcnt lgkmcnt(6)")
                elif ks == 1:
                    A("s_barrier")
                    reads(st, 2, nxt)
                    A("s_waitcnt lgkmcnt(6)")
                elif st + 1 < NST:
                    A("s_barrier")
                    reads(st + 1, 0, nxt)
                    A("s_waitcnt lgkmcnt(6)")
                else:
                    A("s_waitcnt lgkmcnt(0)")
                mfmas(cur, vtype)
    mainloop(False)
    if PROF1: A("s_memtime s[78:79]")
    a.fence()
    A("v_cmp_lt_u32 s[40:41], 31, v1")
    A("s_cmp_lt_u32 s12, 5")
    a.csel("s42", 64*1536, 64*3072, "s60")
    a.csel("s43", 1536, 3072, "s60")
    A(f"s_cselect_b32 s44, {QIMG}, {KVIMG}")
    a.csel("s45", QIMGB, KVIMGB, "s60")
    A("s_cselect_b32 s46, 0, 5")
    A(f"s_cselect_b32 s47, {QSCALE}, 1.0")
    A("s_cmp_eq_u32 s9, 0")
    A("s_cselect_b32 s44, s44, s45")
    A("s_cselect_b32 s47, s47, 1.0")
    A("s_sub_u32 s46, s12, s46")
    A("s_lshl_b32 s46, s46, 5")
    A("s_lshl_b32 s48, s14, 4")
    A("s_add_u32 s46, s46, s48")
    A("s_lshl_b32 s48, s11, 3")
    A("s_lshl_b32 s49, s13, 1")
    A("s_add_u32 s48, s48, s49")
    A("s_mul_i32 s48, s48, s43")
    A("s_add_u32 s44, s44, s48")
    A("s_add_u32 s57, s44, s43")
    A(f"v_and_b32 v{T}, 31, v1")
    A(f"v_lshlrev_b32 v{T}, 4, v{T}")
    for r in range(64):
        A(f"v_mul_f32 v{ACC+r}, s47, v{ACC+r}")
    def qoff(dst, q):
        A(f"s_mul_hi_u32 s50, {q}, s52")
        A("s_lshr_b32 s50, s50, 2")
        A("s_mul_i32 s51, s50, 5")
        A(f"s_sub_u32 s51, {q}, s51")
        A(f"s_mul_i32 {dst}, s50, s42")
        A("s_lshr_b32 s53, s51, 1")
        A("s_lshl_b32 s53, s53, 9")
        A(f"s_add_u32 {dst}, {dst}, s53")
        A("s_and_b32 s53, s51, 1")
        A("s_lshl_b32 s53, s53, 3")
        A(f"s_add_u32 {dst}, {dst}, s53")
    A("s_mov_b32 s52, 0xcccccccd")
    A("v_mov_b32 v12, 0x3f80")
    A("v_mov_b32 v13, 0")
    for ct in range(2):
        for aa in range(4):
            A(f"s_add_u32 s54, s46, {8*ct+2*aa}")
            qoff("s55", "s54")
            A("s_mov_b32 s58, s51")
            A("s_add_u32 s54, s54, 1")
            qoff("s56", "s54")
            A("s_mov_b32 s59, s51")
            A(f"v_mov_b32 v{T+1}, s55")
            A(f"v_mov_b32 v{T+2}, s56")
            A(f"v_cndmask_b32 v{T+1}, v{T+1}, v{T+2}, s[40:41]")
            A(f"v_add_u32 v{T+1}, v{T+1}, v{T}")
            for rt in range(2):
                b = ACC + (ct*2+rt)*16 + 4*aa
                P = 16 + 2*((ct*8+aa*2+rt) % 8)
                A(f"v_cvt_pk_bf16_f32 v{P}, v{b}, v{b+1}")
                A(f"v_cvt_pk_bf16_f32 v{P+1}, v{b+2}, v{b+3}")
                A(f"buffer_store_dwordx2 {vr(P,2)}, v{T+1}, s[4:7], {'s57' if rt else 's44'} offen{STF}")
            lbl = f"L_{name}_kc{ct}{aa}"
            A("s_cmp_lt_u32 s12, 5")
            A(f"s_cbranch_scc1 {lbl}")
            A("s_cmp_eq_u32 s58, 4")
            A("s_cselect_b32 s60, -1, 0")
            A("s_cmp_eq_u32 s59, 4")
            A("s_cselect_b32 s61, -1, 0")
            A("s_or_b32 s49, s60, s61")
            A("s_cmp_eq_u32 s49, 0")
            A(f"s_cbranch_scc1 {lbl}")
            A("s_mov_b64 exec, s[60:61]")
            A(f"buffer_store_dwordx2 v[12:13], v{T+1}, s[4:7], s44 offen offset:8{STF}")
            A(f"buffer_store_dwordx2 v[12:13], v{T+1}, s[4:7], s57 offen offset:8{STF}")
            A("s_mov_b64 exec, -1")
            a.label(lbl)
    A(f"s_branch L_{name}_end")
    a.label(f"L_{name}_v")
    a.fence()
    mainloop(True)
    if PROF1: A("s_memtime s[78:79]")
    a.fence()
    A("s_cmp_eq_u32 s9, 0")
    a.csel("s44", KVIMG, KVIMGB, "s60")
    A("s_lshl_b32 s48, s11, 3")
    A("s_lshl_b32 s49, s13, 1")
    A("s_add_u32 s48, s48, s49")
    A("s_mul_i32 s48, s48, 3072")
    A("s_add_u32 s44, s44, s48")
    A("s_add_u32 s44, s44, 1536")
    A("s_sub_u32 s46, s12, 10")
    A("s_lshl_b32 s46, s46, 7")
    A("s_lshl_b32 s48, s14, 6")
    A("s_add_u32 s46, s46, s48")
    A(f"v_and_b32 v{T}, 31, v1")
    A(f"v_lshrrev_b32 v{T+1}, 5, v1")
    A(f"v_mul_u32_u24 v{T+1}, 384, v{T+1}")
    A("s_mov_b32 s50, 52429")
    A(f"s_mov_b32 s51, {64*3072}")
    for ct in range(2):
        A(f"s_add_u32 s48, s46, {32*ct}")
        A(f"v_add_u32 v{T+2}, s48, v{T}")
        A(f"v_mul_u32_u24 v{T+3}, s50, v{T+2}")
        A(f"v_lshrrev_b32 v{T+3}, 20, v{T+3}")
        A(f"v_mul_u32_u24 v{T+4}, 20, v{T+3}")
        A(f"v_sub_u32 v{T+4}, v{T+2}, v{T+4}")
        A(f"v_mul_lo_u32 v{T+3}, v{T+3}, s51")
        A(f"v_lshl_add_u32 v{T+3}, v{T+4}, 4, v{T+3}")
        A(f"v_add_u32 v{T+3}, v{T+3}, v{T+1}")
        A(f"v_cmp_lt_u32 s[60:61], 15, v{T+4}")
        A(f"v_cmp_eq_u32 vcc, 16, v{T+4}")
        A(f"v_mov_b32 v{T+5}, 0x3f803f80")
        for i in range(4):
            A(f"v_cndmask_b32 v{32+i}, 0, v{T+5}, vcc")
        for rt in range(2):
            for cc in range(2):
                b = ACC + (rt*2+ct)*16 + 8*cc
                P = 16 + 4*((ct*4+rt*2+cc) % 4)
                for i in range(4):
                    A(f"v_cvt_pk_bf16_f32 v{P+i}, v{b+2*i}, v{b+2*i+1}")
                A(f"s_add_u32 s57, s44, {rt*3072+cc*768}")
                A(f"buffer_store_dwordx4 {vr(P,4)}, v{T+3}, s[4:7], s57 offen{STF}")
                A("s_mov_b64 exec, s[60:61]")
                A(f"buffer_store_dwordx4 v[32:35], v{T+3}, s[4:7], s57 offen offset:64{STF}")
                A("s_mov_b64 exec, -1")
    A(f"s_branch L_{name}_end")
    a.label(f"L_{name}_aux")
    a.fence()
    A("s_cmp_lt_u32 s8, 4")
    A(f"s_cbranch_scc1 L_{name}_aux2")
    A("s_barrier")
    A(f"s_branch L_{name}_exit")
    a.label(f"L_{name}_aux2")
    from k1aux import gen_aux
    gen_aux(a, name)
    a.label(f"L_{name}_end")
    if PROF1:
        A("s_memtime s[80:81]")
        A("s_waitcnt vmcnt(0)")
        A("s_memtime s[82:83]")
        A("s_waitcnt lgkmcnt(0)")
        for i, r in enumerate((72, 74, 76, 78, 80, 82)):
            A(f"v_mov_b32 v{16+i}, s{r}")
        A("s_lshl_b32 s84, s2, 3")
        A("s_add_u32 s84, s84, s8")
        A("s_lshl_b32 s84, s84, 5")
        A("s_add_u32 s84, s84, 0x8000000")
        A("v_mov_b32 v24, 0")
        A("s_mov_b64 exec, 1")
        A("buffer_store_dwordx4 v[16:19], v24, s[4:7], s84 offen")
        A("buffer_store_dwordx2 v[20:21], v24, s[4:7], s84 offen offset:16")
    if TRACE: a.trace_end(0)
    a.label(f"L_{name}_exit")
    A("s_endpgm")
    desc = f""".section .rodata,"a"
.p2align 6
.amdhsa_kernel {name}
  .amdhsa_next_free_vgpr 168
  .amdhsa_next_free_sgpr 102
  .amdhsa_accum_offset 168
  .amdhsa_group_segment_fixed_size 0
  .amdhsa_kernarg_size 88
  .amdhsa_user_sgpr_count 2
  .amdhsa_user_sgpr_kernarg_segment_ptr 1
  .amdhsa_system_sgpr_workgroup_id_x 1
.end_amdhsa_kernel
.text
"""
    return a.text(), desc, a.nops
```

```python
from dsl import Asm
from layout import *

TILE_B = 3072
STAGE_B = 8 * TILE_B
LDS_E = 0
LDS_W = 20480
RING = LDS_W + 65536
LDS_WA = RING + 3 * STAGE_B
LDS_TOTAL = LDS_WA + 3072 + 1024
LOG2E = 0x3fb8aa3b
NPER = 4
KKP = 5

class VMQ:
    def __init__(self, a): self.a = a; self.q = []
    def issue(self, text, tag):
        self.a.emit(text); self.q.append(tag)
    def wait(self, tag):
        idx = [i for i, t in enumerate(self.q) if t == tag]
        if not idx: return
        n = len(self.q) - 1 - idx[-1]
        assert n <= 63
        self.a.emit(f"s_waitcnt vmcnt({n})")
        self.q = self.q[idx[-1] + 1:]
    def wait_all(self):
        self.a.emit("s_waitcnt vmcnt(0)"); self.q = []

def gen_k2(name="att_kernel"):
    a = Asm(); A = a.emit
    vm = VMQ(a)
    def vr(b, n): return f"v[{b}:{b+n-1}]"
    Q1 = [4, 8]; Q2 = [12, 14]
    O = [16, 32]; S = [48, 64]; P = 80
    K1 = [88, 92]; K2 = [96, 98]; V = [100, 108]
    GB = [116, 132]
    XF = [148, 156, 164, 224, 232, 240]
    WF = 172
    AK1 = [188, 189, 190]; AK2 = [191, 192, 193]; AV = [194, 195, 196]
    AW = [[197, 198], [199, 200]]
    vDma = 201; vDmaW = [202, 203, 204, 205]; vX = 206; vG = 207; vRow = 208
    lK1, lK2, lV = 209, 210, 211
    T = 212
    a.raw(f".globl {name}\n.p2align 8\n.type {name},@function\n{name}:")
    if TRACE: a.trace_begin()
    A("s_cmp_ge_u32 s2, 256")
    A(f"s_cbranch_scc1 L_{name}_exit")
    if PROF2: A("s_memtime s[42:43]")
    A("s_load_dwordx2 s[4:5], s[0:1], 80")
    A("s_load_dwordx2 s[72:73], s[0:1], 0")
    A("s_load_dwordx4 s[76:79], s[0:1], 32")
    A("s_load_dwordx2 s[64:65], s[0:1], 72")
    A("v_and_b32 v1, 63, v0")
    A("v_lshrrev_b32 v3, 6, v0")
    A("v_readfirstlane_b32 s8, v3")
    A("s_and_b32 s62, s2, 7")
    A("s_lshr_b32 s63, s2, 3")
    A("s_lshl_b32 s9, s62, 2")
    A("s_and_b32 s10, s63, 3")
    A("s_add_u32 s9, s9, s10")
    A("s_lshr_b32 s10, s63, 2")
    A("s_and_b32 s37, s8, 3")
    A("s_lshr_b32 s38, s8, 2")
    A("s_lshl_b32 s39, s37, 1")
    A("s_add_u32 s39, s39, s38")
    A("v_and_b32 v2, 31, v1")
    A("v_lshrrev_b32 v3, 5, v1")
    A("v_cmp_lt_u32 s[16:17], 31, v1")
    A(f"v_lshlrev_b32 v{lK1}, 4, v1")
    A(f"v_lshlrev_b32 v{lK2}, 4, v2")
    A(f"v_lshl_add_u32 v{lK2}, v3, 3, v{lK2}")
    A(f"v_add_u32 v{lK2}, 1024, v{lK2}")
    A(f"v_min_u32 v{T+1}, 21, v2")
    A(f"v_mul_u32_u24 v{T}, 384, v3")
    A(f"v_lshl_add_u32 v{lV}, v{T+1}, 4, v{T}")
    A(f"v_add_u32 v{lV}, 1536, v{lV}")
    A("s_waitcnt lgkmcnt(0)")
    if PROF2: A("s_memtime s[48:49]")
    A("s_mov_b32 s6, 0x10000000"); A("s_mov_b32 s7, 0x00020000")
    A("s_mov_b32 s66, 256"); A("s_mov_b32 s67, 0x00020000")
    A(f"s_mov_b32 s74, {2048*1280}"); A("s_mov_b32 s75, 0x00020000")
    A("s_mul_i32 s57, s9, 800")
    A("s_add_u32 s44, s78, s57"); A("s_addc_u32 s45, s79, 0"); A("s_mov_b32 s46, 800"); A("s_mov_b32 s47, 0x00020000")
    from k2fm import fm_preload, fm_pack
    fm_preload(a, dict(vm=vm, T=T, LDS_WA=LDS_WA, name=name))
    A(f"s_mul_i32 s11, s9, {64*TILE_B}")
    A(f"s_add_u32 s11, s11, {KVIMG}")
    A("s_mul_i32 s18, s8, 3072")
    A(f"v_add_u32 v{vDma}, s18, v{lK1}")
    A("s_lshl_b32 s19, s10, 3")
    A("s_lshl_b32 s20, s37, 1")
    A("s_add_u32 s20, s20, s19")
    A("s_lshl_b32 s21, s9, 6")
    A("s_add_u32 s20, s20, s21")
    A("s_mul_i32 s20, s20, 1536")
    A(f"s_add_u32 s20, s20, {QIMG}")
    for t in range(2):
        vm.issue(f"buffer_load_dwordx4 {vr(Q1[t],4)}, v{lK1}, s[4:7], s20 offen offset:{t*1536}", "q")
        vm.issue(f"buffer_load_dwordx2 {vr(Q2[t],2)}, v{lK2}, s[4:7], s20 offen offset:{t*1536}", "q")
    def dma_kv(st):
        A(f"s_add_u32 m0, s18, {RING + (st%3)*STAGE_B}")
        A(f"s_add_u32 s23, s11, {st*STAGE_B}")
        for p in range(3):
            vm.issue(f"buffer_load_dwordx4 v{vDma}, s[4:7], s23 offen offset:{p*1024} lds", f"kv{st}")
    dma_kv(0)
    if PROF2: A("s_memtime s[50:51]")
    A("s_add_u32 s19, s19, s39")
    A("s_lshl_b32 s21, s19, 5")
    A(f"v_add_u32 v{vRow}, s21, v2")
    A(f"v_lshlrev_b32 v{T}, 2, v{vRow}")
    A(f"s_mov_b32 s22, {GATE}")
    vm.issue(f"buffer_load_dword v{vG}, v{T}, s[4:7], s22 offen", "g")
    ctx0 = dict(vm=vm, T=T, LDS_WA=LDS_WA, vr=vr, name=name)
    A(f"s_mul_i32 s27, s38, {4*TILE_B}")
    for b in range(3):
        A(f"s_add_u32 s29, s27, {RING + b*STAGE_B}")
        A(f"v_add_u32 v{AK1[b]}, s29, v{lK1}")
        A(f"v_add_u32 v{AK2[b]}, s29, v{lK2}")
        A(f"v_add_u32 v{AV[b]}, s29, v{lV}")
    for t in range(2):
        for r in range(16):
            A(f"v_mov_b32 v{O[t]+r}, 0")
    if PROF2: A("s_memtime s[68:69]")
    vm.wait("kv0")
    if PROF2: A("s_memtime s[70:71]")
    for t in range(2):
        A(f"v_cndmask_b32 v{Q2[t]}, v{Q2[t]}, 0, s[16:17]")
        A(f"v_cndmask_b32 v{Q2[t]+1}, v{Q2[t]+1}, 0, s[16:17]")
    A("s_barrier")
    A(f"v_add_u32 v{T}, {RING}, v{lK1}")
    A(f"v_add_u32 v{T+1}, {RING}, v{lK2}")
    A(f"ds_read_b128 {vr(K1[0],4)}, v{T}")
    A(f"ds_read_b64 {vr(K2[0],2)}, v{T+1}")
    A("s_waitcnt lgkmcnt(0)")
    for t in range(2):
        A(f"v_mfma_f32_32x32x16_bf16 {vr(S[t],16)}, {vr(K1[0],4)}, {vr(Q1[t],4)}, 0")
        A(f"v_mfma_f32_32x32x8bf16_1k {vr(S[t],16)}, {vr(K2[0],2)}, {vr(Q2[t],2)}, {vr(S[t],16)}")
    A(f"ds_read_b128 {vr(K1[0],4)}, v{AK1[0]}")
    A(f"ds_read_b64 {vr(K2[0],2)}, v{AK2[0]}")
    A(f"ds_read_b128 {vr(V[0],4)}, v{AV[0]}")
    A(f"ds_read_b128 {vr(V[0]+4,4)}, v{AV[0]} offset:768")
    def setmax_from(t, q2):
        A(f"v_mov_b32 v{T+11}, v{t}")
        A(f"v_permlane32_swap_b32 v{t}, v{T+11}")
        A(f"v_max_f32 v{t}, v{t}, v{T+11}")
        A(f"v_sub_f32 v{t}, 0, v{t}")
        A(f"v_cvt_pk_bf16_f32 v{t}, v{t}, 0")
        A(f"v_cndmask_b32 v{q2}, v{q2}, v{t}, s[16:17]")
    for t in range(2):
        Sb = S[t]
        A(f"v_max3_f32 v{T}, v{Sb}, v{Sb+1}, v{Sb+2}")
        for r in range(3, 15, 2):
            A(f"v_max3_f32 v{T}, v{T}, v{Sb+r}, v{Sb+r+1}")
        A(f"v_max_f32 v{T}, v{T}, v{Sb+15}")
        setmax_from(T, Q2[t])
    A("s_waitcnt lgkmcnt(0)")
    A(f"v_mfma_f32_32x32x16_bf16 {vr(S[0],16)}, {vr(K1[0],4)}, {vr(Q1[0],4)}, 0")
    A(f"v_mfma_f32_32x32x8bf16_1k {vr(S[0],16)}, {vr(K2[0],2)}, {vr(Q2[0],2)}, {vr(S[0],16)}")
    for i in range(4):
        A(f"v_mov_b32 v{P+4+i}, 0")
        A(f"v_mov_b32 v{V[1]+4+i}, 0")
    A(f"v_mov_b32 v{S[1]+14}, 0")
    A(f"v_mov_b32 v{S[1]+15}, 0")
    a.fence()

    hooks_fm = 8 + 6

    from k2fm import gen_fm2, gen_reduce_publish, gen_signal, gen_linb_prefetch, gen_linb_final, fm_preload, gen_signal_pre, fm_loads, gen_linb_sum
    ctx = dict(lK1=lK1, lK2=lK2, lV=lV, LDS_WA=LDS_WA, vr=vr, GB=GB, T=T, vG=vG, vRow=vRow, name=name, vm=vm, XF=XF, WF=WF, LDS_W=LDS_W, LDS_E=LDS_E)

    for st in range(8):
        for u in range(8):
            U = st*8 + u
            p = u & 1; n = 1 - p; kt = u >> 1
            buf = st % 3; nbuf = (st + 1) % 3
            if PROF2 and u == 0: A(f"s_memtime s[{84+2*st}:{85+2*st}]") if st < 8 else None
            A("s_waitcnt lgkmcnt(0)")
            if u == 6 and st < 7:
                vm.wait(f"kv{st+1}")
                if U == hooks_fm + 16: gen_signal_pre(a, ctx)
                A("s_barrier")
                if st + 2 < 8: dma_kv(st + 2)
            if U == 0: dma_kv(1)
            if U == 1: fm_loads(a, ctx)
            if U == 6: fm_pack(a, dict(ctx0, regbase=224))
            if U == hooks_fm: gen_fm2(a, ctx)
            if U == hooks_fm + 8: gen_reduce_publish(a, ctx)
            if U == hooks_fm + 16: gen_signal(a, ctx)
            if U == 40:
                A("s_mov_b32 s56, 0")
                gen_linb_prefetch(a, ctx, final=True)
            if U == 46: gen_linb_sum(a, ctx)
            if U == 54: gen_linb_final(a, ctx)
            if p == 0:
                ktn = kt + 1
                bb, kk_ = (buf, ktn) if ktn < 4 else (nbuf, 0)
                if not (st == 7 and ktn == 4):
                    A(f"ds_read_b128 {vr(K1[ktn%2],4)}, v{AK1[bb]} offset:{kk_*TILE_B}")
                    A(f"ds_read_b64 {vr(K2[ktn%2],2)}, v{AK2[bb]} offset:{kk_*TILE_B}")
            else:
                ktn = kt + 1
                bb, kk_ = (buf, ktn) if ktn < 4 else (nbuf, 0)
                if not (st == 7 and ktn == 4):
                    A(f"ds_read_b128 {vr(V[ktn%2],4)}, v{AV[bb]} offset:{kk_*TILE_B}")
            Sb = S[p]; Sp = S[n]
            ktq = (u + 1) >> 1
            Kset = ktq % 2
            last = (st == 7 and u == 7)
            def ex(r): A(f"v_exp_f32 v{Sb+r}, v{Sb+r}")
            def cv(i): A(f"v_cvt_pk_bf16_f32 v{P+i}, v{Sb+2*i}, v{Sb+2*i+1}")
            A(f"v_cvt_pk_bf16_f32 v{P+7}, v{Sp+14}, v{Sp+15}")
            if not last:
                A(f"v_mfma_f32_32x32x16_bf16 {vr(S[n],16)}, {vr(K1[Kset],4)}, {vr(Q1[n],4)}, 0")
            ex(0); ex(1); ex(2); cv(0); ex(3)
            ktp = ((u - 1) >> 1) % 4 if u > 0 else 3
            A(f"v_mfma_f32_32x32x16_bf16 {vr(O[n],16)}, {vr(V[ktp%2]+4,4)}, {vr(P+4,4)}, {vr(O[n],16)}")
            if p == 1:
                ktn = kt + 1
                bb, kk_ = (buf, ktn) if ktn < 4 else (nbuf, 0)
                if not (st == 7 and ktn == 4):
                    A(f"ds_read_b128 {vr(V[ktn%2]+4,4)}, v{AV[bb]} offset:{kk_*TILE_B+768}")
            ex(4); cv(1); ex(5)
            ex(6); cv(2); ex(7)
            if not last:
                A(f"v_mfma_f32_32x32x8bf16_1k {vr(S[n],16)}, {vr(K2[Kset],2)}, {vr(Q2[n],2)}, {vr(S[n],16)}")
            ex(8); cv(3); ex(9)
            ex(10); cv(4); ex(11)
            A(f"v_mfma_f32_32x32x16_bf16 {vr(O[p],16)}, {vr(V[kt%2],4)}, {vr(P,4)}, {vr(O[p],16)}")
            ex(12); cv(5); ex(13)
            ex(14); cv(6); ex(15)
    if PROF2: A("s_memtime s[30:31]")
    if PROF2: A("s_waitcnt lgkmcnt(0)")
    if PROF2: A("s_mov_b32 s100, s30")
    A(f"v_cvt_pk_bf16_f32 v{P+7}, v{S[1]+14}, v{S[1]+15}")
    A(f"v_mfma_f32_32x32x16_bf16 {vr(O[1],16)}, {vr(V[1]+4,4)}, {vr(P+4,4)}, {vr(O[1],16)}")
    a.fence()
    CMB = LDS_W
    A(f"v_lshlrev_b32 v{T}, 2, v1")
    A("s_mul_i32 s27, s37, 6144")
    A("s_mul_i32 s29, s38, 3072")
    A("s_add_u32 s27, s27, s29")
    A(f"s_add_u32 s27, s27, {CMB}")
    A(f"v_add_u32 v{T+1}, s27, v{T}")
    A(f"s_xor_b32 s29, s27, 0")
    A("s_mul_i32 s29, s37, 6144")
    A("s_xor_b32 s30, s38, 1")
    A("s_mul_i32 s30, s30, 3072")
    A("s_add_u32 s29, s29, s30")
    A(f"s_add_u32 s29, s29, {CMB}")
    A(f"v_add_u32 v{T+2}, s29, v{T}")
    A("s_cmp_eq_u32 s38, 0")
    A(f"s_cbranch_scc1 L_{name}_c0")
    for r in range(12):
        A(f"ds_write_b32 v{T+1}, v{O[0]+r} offset:{r*256}")
    for r in range(16):
        A(f"v_mov_b32 v{O[0]+r}, v{O[1]+r}")
    for r in range(4): A(f"v_mov_b32 v{Q1[0]+r}, v{Q1[1]+r}")
    for r in range(2): A(f"v_mov_b32 v{Q2[0]+r}, v{Q2[1]+r}")
    A(f"s_branch L_{name}_c1")
    a.label(f"L_{name}_c0")
    for r in range(12):
        A(f"ds_write_b32 v{T+1}, v{O[1]+r} offset:{r*256}")
    a.label(f"L_{name}_c1")
    A("s_waitcnt lgkmcnt(0)")
    A("s_barrier")
    for r in range(12):
        A(f"ds_read_b32 v{S[0]+r}, v{T+2} offset:{r*256}")
    A("s_waitcnt lgkmcnt(0)")
    for r in range(12):
        A(f"v_add_f32 v{O[0]+r}, v{O[0]+r}, v{S[0]+r}")
    OO = O[0]; QQ1 = Q1[0]; QQ2 = Q2[0]
    A("s_mov_b32 s25, 0")
    a.label(f"L_{name}_epi")
    a.fence()
    A(f"v_add_f32 v{T}, |v{OO}|, |v{OO+1}|")
    for r in range(2, 9):
        A(f"v_add_f32 v{T}, v{T}, |v{OO+r}|")
    A(f"v_add_f32 v{T+1}, |v{OO+9}|, |v{OO+10}|")
    A(f"v_add_f32 v{T+1}, v{T+1}, |v{OO+11}|")
    A(f"v_cndmask_b32 v{T+1}, v{T+1}, 0, s[16:17]")
    A(f"v_add_f32 v{T}, v{T}, v{T+1}")
    A("s_mov_b32 s26, 0x7f000000")
    A(f"v_cmp_nle_f32 vcc, v{T}, s26")
    A("s_cmp_lg_u32 s25, 0")
    A(f"s_cbranch_scc1 L_{name}_store")
    A(f"s_cbranch_vccnz L_{name}_fallback")
    a.label(f"L_{name}_store")
    a.fence()
    A(f"v_mov_b32 v{T}, v{OO+8}")
    A(f"v_mov_b32 v{T+1}, v{OO+8}")
    A(f"v_permlane32_swap_b32 v{T}, v{T+1}")
    A(f"v_rcp_f32 v{T+1}, v{T+1}")
    A(f"v_mul_f32 v{T+1}, v{T+1}, v{vG}")
    for r in range(12):
        A(f"v_mul_f32 v{OO+r}, v{OO+r}, v{T+1}")
    PK = S[0]
    for i in range(6):
        A(f"v_cvt_pk_bf16_f32 v{PK+i}, v{OO+2*i}, v{OO+2*i+1}")
    from k2fm import store_o
    store_o(a, ctx, PK, 0)
    if PROF2: A("s_memtime s[30:31]")
    if PROF2: A("s_waitcnt lgkmcnt(0)")
    if PROF2: A("s_mov_b32 s101, s30")
    A(f"s_branch L_{name}_end")
    a.label(f"L_{name}_fallback")
    a.fence()
    A("s_mov_b32 s25, 1")
    A(f"v_cndmask_b32 v{QQ2}, v{QQ2}, 0, s[16:17]")
    A(f"v_mov_b32 v{T+4}, 0xff800000")
    A("s_mov_b32 s35, s11")
    A("s_mov_b32 s36, 0")
    a.label(f"L_{name}_fb1")
    a.fence()
    A(f"buffer_load_dwordx4 {vr(K1[0],4)}, v{lK1}, s[4:7], s35 offen")
    A(f"buffer_load_dwordx2 {vr(K2[0],2)}, v{lK2}, s[4:7], s35 offen")
    A("s_waitcnt vmcnt(0)")
    A(f"v_mfma_f32_32x32x16_bf16 {vr(S[0],16)}, {vr(K1[0],4)}, {vr(QQ1,4)}, 0")
    A(f"v_mfma_f32_32x32x8bf16_1k {vr(S[0],16)}, {vr(K2[0],2)}, {vr(QQ2,2)}, {vr(S[0],16)}")
    for r in range(0, 16, 2):
        A(f"v_max3_f32 v{T+4}, v{T+4}, v{S[0]+r}, v{S[0]+r+1}")
    A(f"s_add_u32 s35, s35, {TILE_B}")
    A("s_add_u32 s36, s36, 1")
    A("s_cmp_lt_u32 s36, 64")
    A(f"s_cbranch_scc1 L_{name}_fb1")
    a.fence()
    setmax_from(T+4, QQ2)
    for r in range(16):
        A(f"v_mov_b32 v{OO+r}, 0")
    A("s_mov_b32 s35, s11")
    A("s_mov_b32 s36, 0")
    a.label(f"L_{name}_fb2")
    a.fence()
    A(f"buffer_load_dwordx4 {vr(K1[0],4)}, v{lK1}, s[4:7], s35 offen")
    A(f"buffer_load_dwordx2 {vr(K2[0],2)}, v{lK2}, s[4:7], s35 offen")
    A(f"buffer_load_dwordx4 {vr(V[0],4)}, v{lV}, s[4:7], s35 offen")
    A(f"buffer_load_dwordx4 {vr(V[0]+4,4)}, v{lV}, s[4:7], s35 offen offset:768")
    A("s_waitcnt vmcnt(0)")
    A(f"v_mfma_f32_32x32x16_bf16 {vr(S[0],16)}, {vr(K1[0],4)}, {vr(QQ1,4)}, 0")
    A(f"v_mfma_f32_32x32x8bf16_1k {vr(S[0],16)}, {vr(K2[0],2)}, {vr(QQ2,2)}, {vr(S[0],16)}")
    for r in range(16):
        A(f"v_exp_f32 v{S[0]+r}, v{S[0]+r}")
    for i in range(8):
        A(f"v_cvt_pk_bf16_f32 v{P+i}, v{S[0]+2*i}, v{S[0]+2*i+1}")
    A(f"v_mfma_f32_32x32x16_bf16 {vr(OO,16)}, {vr(V[0],4)}, {vr(P,4)}, {vr(OO,16)}")
    A(f"v_mfma_f32_32x32x16_bf16 {vr(OO,16)}, {vr(V[0]+4,4)}, {vr(P+4,4)}, {vr(OO,16)}")
    A(f"s_add_u32 s35, s35, {TILE_B}")
    A("s_add_u32 s36, s36, 1")
    A("s_cmp_lt_u32 s36, 64")
    A(f"s_cbranch_scc1 L_{name}_fb2")
    A(f"s_branch L_{name}_epi")
    a.label(f"L_{name}_end")
    if PROF2:
        A("s_memtime s[40:41]")
        A("s_waitcnt lgkmcnt(0)")
        for i in range(8):
            A(f"v_mov_b32 v{16+i}, s{84+2*i}")
        A("v_mov_b32 v24, s40")
        A("v_mov_b32 v25, s42")
        A("v_mov_b32 v26, s100")
        A("v_mov_b32 v27, s101")
        A("v_mov_b32 v28, s25")
        A("v_mov_b32 v29, s48")
        A("v_mov_b32 v31, s50")
        A("v_mov_b32 v32, s68")
        A("v_mov_b32 v33, s70")
        A("s_lshl_b32 s52, s2, 3")
        A("s_add_u32 s52, s52, s8")
        A("s_lshl_b32 s52, s52, 6")
        A("s_add_u32 s52, s52, 0x8000000")
        A("v_mov_b32 v30, 0")
        A("s_mov_b64 exec, 1")
        A("buffer_store_dwordx4 v[16:19], v30, s[4:7], s52 offen")
        A("buffer_store_dwordx4 v[20:23], v30, s[4:7], s52 offen offset:16")
        A("buffer_store_dwordx4 v[24:27], v30, s[4:7], s52 offen offset:32")
        A("v_mov_b32 v34, v29")
        A("v_mov_b32 v35, v31")
        A("v_mov_b32 v36, v32")
        A("v_mov_b32 v37, v33")
        A("buffer_store_dword v28, v30, s[4:7], s52 offen offset:48")
        A("s_add_u32 s52, s52, 0x100000")
        A("buffer_store_dwordx4 v[34:37], v30, s[4:7], s52 offen")
    if TRACE: a.trace_end(1)
    a.label(f"L_{name}_exit")
    A("s_endpgm")
    desc = f""".section .rodata,"a"
.p2align 6
.amdhsa_kernel {name}
  .amdhsa_next_free_vgpr 256
  .amdhsa_next_free_sgpr 102
  .amdhsa_accum_offset 256
  .amdhsa_group_segment_fixed_size 0
  .amdhsa_kernarg_size 88
  .amdhsa_user_sgpr_count 2
  .amdhsa_user_sgpr_kernarg_segment_ptr 1
  .amdhsa_system_sgpr_workgroup_id_x 1
.end_amdhsa_kernel
.text
"""
    return a.text(), desc, a.nops
```

```python
from layout import *
LOG2E = 0x3fb8aa3b

def fm_preload(a, ctx):
    A = a.emit; vm = ctx["vm"]; T = ctx["T"]; name = ctx["name"]
    A("s_cmp_lg_u32 s8, 0")
    A(f"s_cbranch_scc1 L_{name}_nowp")
    A(f"s_mov_b32 m0, {ctx['LDS_WA'] + 3072}")
    A(f"v_lshlrev_b32 v{T}, 4, v1")
    A(f"buffer_load_dwordx4 v{T}, s[44:47], 0 offen lds")
    a.label(f"L_{name}_nowp")

def fm_pack(a, ctx):
    A = a.emit; T = ctx["T"]; name = ctx["name"]
    X = T
    A("s_cmp_lg_u32 s8, 0")
    A(f"s_cbranch_scc1 L_{name}_nopk")
    A(f"v_subrev_u32 v{X}, 2, v2")
    A(f"v_cmp_gt_u32 vcc, 18, v2")
    A(f"v_cndmask_b32 v{X}, v{X}, v2, vcc")
    A(f"v_subrev_u32 v{X+1}, 18, v2")
    A(f"v_cmp_gt_u32 vcc, 2, v{X+1}")
    A(f"v_cmp_lt_u32 s[58:59], 21, v2")
    A("s_or_b64 s[58:59], vcc, s[58:59]")
    A(f"v_cndmask_b32 v{X}, v{X}, 0, s[58:59]")
    A(f"v_lshlrev_b32 v{X}, 1, v{X}")
    A(f"v_add_u32 v{X}, {ctx['LDS_WA'] + 3072}, v{X}")
    A(f"v_mul_u32_u24 v{X+2}, 320, v3")
    A(f"v_add_u32 v{X+2}, v{X+2}, v{X}")
    A("s_or_b64 s[60:61], s[58:59], s[16:17]")
    A(f"v_lshlrev_b32 v{X+4}, 2, v1")
    A(f"v_add_u32 v{X+4}, {ctx['LDS_WA']}, v{X+4}")
    R0 = 172
    for t in range(8):
        A(f"ds_read_u16 v{R0+t}, v{X+2} offset:{t*40}")
    A("s_waitcnt lgkmcnt(0)")
    for i in range(4):
        A(f"v_lshl_or_b32 v{R0+8+i}, v{R0+2*i+1}, 16, v{R0+2*i}")
        A(f"v_cndmask_b32 v{R0+8+i}, v{R0+8+i}, 0, s[58:59]")
        A(f"ds_write_b32 v{X+4}, v{R0+8+i} offset:{i*256}")
    for t in range(4):
        A(f"ds_read_u16 v{R0+t}, v{X} offset:{640+t*40}")
    A("s_waitcnt lgkmcnt(0)")
    for i in range(2):
        A(f"v_lshl_or_b32 v{R0+8+i}, v{R0+2*i+1}, 16, v{R0+2*i}")
        A(f"v_cndmask_b32 v{R0+8+i}, v{R0+8+i}, 0, s[60:61]")
        A(f"ds_write_b32 v{X+4}, v{R0+8+i} offset:{(4+i)*256}")
    a.label(f"L_{name}_nopk")

def fm_loads(a, ctx):
    A = a.emit; vr = ctx["vr"]; vm = ctx["vm"]; lK1 = ctx["lK1"]; lK2 = ctx["lK2"]; lV = ctx["lV"]
    A("s_lshl_b32 s54, s9, 6")
    A("s_add_u32 s54, s54, s19")
    A("s_mul_i32 s55, s54, 1536")
    A(f"s_add_u32 s55, s55, {QIMGB}")
    A("s_mul_i32 s56, s54, 3072")
    A(f"s_add_u32 s56, s56, {KVIMGB}")
    vm.issue(f"buffer_load_dwordx4 {vr(148,4)}, v{lK1}, s[4:7], s55 offen", "fm")
    vm.issue(f"buffer_load_dwordx2 {vr(152,2)}, v{lK2}, s[4:7], s55 offen", "fm")
    vm.issue(f"buffer_load_dwordx4 {vr(154,4)}, v{lK1}, s[4:7], s56 offen", "fm")
    vm.issue(f"buffer_load_dwordx2 {vr(158,2)}, v{lK2}, s[4:7], s56 offen", "fm")
    vm.issue(f"buffer_load_dwordx4 {vr(160,4)}, v{lV}, s[4:7], s56 offen", "fm")
    vm.issue(f"buffer_load_dwordx4 {vr(164,4)}, v{lV}, s[4:7], s56 offen offset:768", "fm")

def gen_fm2(a, ctx):
    A = a.emit; vr = ctx["vr"]; GB = ctx["GB"]; T = ctx["T"]; vm = ctx["vm"]; name = ctx["name"]
    LDS_W = ctx["LDS_W"]; LDS_E = ctx["LDS_E"]
    a.fence()
    vm.wait("fm")
    WA = 168
    A(f"v_lshlrev_b32 v{T}, 2, v1")
    A(f"v_add_u32 v{T}, {ctx['LDS_WA']}, v{T}")
    for i in range(6):
        A(f"ds_read_b32 v{WA+i}, v{T} offset:{i*256}")
    A(f"v_cndmask_b32 v152, v152, 0, s[16:17]")
    A(f"v_cndmask_b32 v153, v153, 0, s[16:17]")
    A("s_waitcnt lgkmcnt(0)")
    Z = 224; EP = GB[0]; EN = GB[1]
    X = T
    A(f"s_mov_b32 s57, {LOG2E}")
    A("s_mul_i32 s58, s8, 6144")
    A(f"s_add_u32 s58, s58, {LDS_W}")
    PK = 240
    for side in ("q", "k"):
        B1, B2 = (148, 152) if side == "q" else (154, 158)
        A(f"v_mfma_f32_32x32x16_bf16 {vr(Z,16)}, {vr(WA,4)}, {vr(B1,4)}, 0")
        A(f"v_mfma_f32_32x32x8bf16_1k {vr(Z,16)}, {vr(WA+4,2)}, {vr(B2,2)}, {vr(Z,16)}")
        mx, mn, t1 = X, X+1, X+2
        A(f"v_max3_f32 v{mx}, v{Z}, v{Z+1}, v{Z+2}")
        A(f"v_min3_f32 v{mn}, v{Z}, v{Z+1}, v{Z+2}")
        for r in (3, 5, 7):
            A(f"v_max3_f32 v{mx}, v{mx}, v{Z+r}, v{Z+r+1}")
            A(f"v_min3_f32 v{mn}, v{mn}, v{Z+r}, v{Z+r+1}")
        A(f"v_max_f32 v{mx}, v{mx}, v{Z+9}")
        A(f"v_min_f32 v{mn}, v{mn}, v{Z+9}")
        for reg, op in ((mx, "v_max_f32"), (mn, "v_min_f32")):
            A(f"v_mov_b32 v{t1}, v{reg}")
            A(f"v_permlane32_swap_b32 v{reg}, v{t1}")
            A(f"{op} v{reg}, v{reg}, v{t1}")
        A(f"v_mul_f32 v{mx}, s57, v{mx}")
        A(f"v_mul_f32 v{mn}, s57, v{mn}")
        for r in range(10):
            A(f"v_fma_f32 v{EP+r}, v{Z+r}, s57, -v{mx}")
            A(f"v_fma_f32 v{EN+r}, -v{Z+r}, s57, v{mn}")
        for r in range(10):
            A(f"v_exp_f32 v{EP+r}, v{EP+r}")
            A(f"v_exp_f32 v{EN+r}, v{EN+r}")
        if side == "k":
            for E_, sreg in ((EP, X+3), (EN, X+4)):
                A(f"v_add_f32 v{sreg}, v{E_}, v{E_+1}")
                for r in range(2, 10):
                    A(f"v_add_f32 v{sreg}, v{sreg}, v{E_+r}")
                A(f"v_mov_b32 v{t1}, v{sreg}")
                A(f"v_permlane32_swap_b32 v{sreg}, v{t1}")
                A(f"v_add_f32 v{sreg}, v{sreg}, v{t1}")
                A(f"v_rcp_f32 v{sreg}, v{sreg}")
                for r in range(10):
                    A(f"v_mul_f32 v{E_+r}, v{E_+r}, v{sreg}")
        for si, E_ in enumerate((EP, EN)):
            for i in range(5):
                A(f"v_cvt_pk_bf16_f32 v{PK+6*si+i}, v{E_+2*i}, v{E_+2*i+1}")
            A(f"v_mov_b32 v{PK+6*si+5}, 0")
        if side == "q":
            A("s_mul_i32 s59, s8, 2560")
            A(f"s_add_u32 s59, s59, {LDS_E}")
            A(f"v_lshlrev_b32 v{t1}, 2, v1")
            A(f"v_add_u32 v{t1}, s59, v{t1}")
            for si in range(2):
                for i in range(5):
                    A(f"ds_write_b32 v{t1}, v{PK+6*si+i} offset:{(si*5+i)*256}")
        else:
            A(f"v_lshlrev_b32 v{t1}, 6, v2")
            A(f"v_lshl_add_u32 v{t1}, v3, 3, v{t1}")
            A(f"v_add_u32 v{t1}, s58, v{t1}")
            for si in range(2):
                for aa in range(3):
                    A(f"ds_write_b64 v{t1}, {vr(PK+6*si+2*aa,2)} offset:{si*2048+aa*16}")
    A(f"v_bfe_u32 v{X+5}, v1, 2, 2")
    A(f"v_lshl_add_u32 v{X+5}, v3, 2, v{X+5}")
    A(f"v_lshlrev_b32 v{X+5}, 6, v{X+5}")
    A(f"v_bfe_u32 v{X+6}, v1, 4, 1")
    A(f"v_lshl_add_u32 v{X+5}, v{X+6}, 5, v{X+5}")
    A(f"v_and_b32 v{X+6}, 3, v1")
    A(f"v_lshl_add_u32 v{X+5}, v{X+6}, 3, v{X+5}")
    A(f"v_add_u32 v{X+5}, s58, v{X+5}")
    A("s_waitcnt lgkmcnt(0)")
    VFa = 160; BF = 172
    for si in range(2):
        for c in range(2):
            for u in range(2):
                A(f"ds_read_b64_tr_b16 {vr(BF+8*si+4*c+2*u,2)}, v{X+5} offset:{si*2048+(16*c+8*u)*64}")
    A("s_waitcnt lgkmcnt(0)")
    for si in range(2):
        acc = vr(GB[si], 16)
        A(f"v_mfma_f32_32x32x16_bf16 {acc}, {vr(VFa,4)}, {vr(BF+8*si,4)}, 0")
        A(f"v_mfma_f32_32x32x16_bf16 {acc}, {vr(VFa+4,4)}, {vr(BF+8*si+4,4)}, {acc}")
    A(f"v_lshlrev_b32 v{X}, 2, v1")
    A(f"v_add_u32 v{X}, s58, v{X}")
    for si in range(2):
        for r in range(12):
            A(f"ds_write_b32 v{X}, v{GB[si]+r} offset:{(si*12+r)*256}")
    a.fence()

def gen_reduce_publish(a, ctx):
    A = a.emit; vr = ctx["vr"]; T = ctx["T"]; vm = ctx["vm"]; LDS_W = ctx["LDS_W"]
    X = T
    A(f"v_lshlrev_b32 v{X}, 2, v1")
    A("s_mul_i32 s57, s8, 768")
    A(f"s_add_u32 s57, s57, {LDS_W}")
    A(f"v_add_u32 v{X+1}, s57, v{X}")
    B = 148
    for i in range(3):
        for w in range(8):
            A(f"ds_read_b32 v{B+i*8+w}, v{X+1} offset:{w*6144+i*256}")
    A("s_waitcnt lgkmcnt(0)")
    for i in range(3):
        for w in range(1, 8):
            A(f"v_add_f32 v{B+i*8}, v{B+i*8}, v{B+i*8+w}")
    A("s_lshl_b32 s54, s9, 3")
    A("s_add_u32 s54, s54, s10")
    A("s_lshl_b32 s54, s54, 13")
    A(f"s_add_u32 s54, s54, {KVSUM}")
    A("s_mul_i32 s55, s8, 768")
    A("s_add_u32 s54, s54, s55")
    A("s_cmp_ge_u32 s8, 4")
    A("s_cselect_b32 s55, 1024, 0")
    A("s_add_u32 s54, s54, s55")
    for i in range(3):
        vm.issue(f"buffer_store_dword v{B+i*8}, v{X}, s[4:7], s54 offen offset:{i*256} sc0 sc1", "pub")

def gen_signal_pre(a, ctx):
    ctx["vm"].wait("pub")

def gen_signal(a, ctx):
    A = a.emit; T = ctx["T"]; vm = ctx["vm"]; name = ctx["name"]
    A("s_cmp_lg_u32 s8, 0")
    A(f"s_cbranch_scc1 L_{name}_nosig")
    A("s_lshl_b32 s54, s9, 7")
    A("s_lshl_b32 s55, s10, 2")
    A("s_add_u32 s54, s54, s55")
    A(f"s_add_u32 s54, s54, {FLAGS}")
    A(f"v_mov_b32 v{T}, 0")
    A(f"v_mov_b32 v{T+1}, 1")
    A("s_mov_b64 exec, 1")
    A(f"buffer_store_dword v{T+1}, v{T}, s[4:7], s54 offen sc0 sc1")
    A("s_mov_b64 exec, -1")
    a.label(f"L_{name}_nosig")

def gen_linb_prefetch(a, ctx, final=False):
    A = a.emit; vr = ctx["vr"]; T = ctx["T"]; vm = ctx["vm"]; name = ctx["name"]; GB = ctx["GB"]
    X = T
    sfx = "f" if final else "p"
    if final:
        A("s_cmp_lg_u32 s56, 0")
        A(f"s_cbranch_scc1 L_{name}_pdone{sfx}")
    A("s_lshl_b32 s54, s9, 7")
    A(f"s_add_u32 s54, s54, {FLAGS}")
    A(f"v_and_b32 v{X}, 7, v1")
    A(f"v_lshlrev_b32 v{X}, 2, v{X}")
    a.label(f"L_{name}_poll{sfx}")
    A(f"buffer_load_dword v{X+1}, v{X}, s[4:7], s54 offen sc0 sc1")
    A("s_waitcnt vmcnt(0)")
    vm.q = []
    A(f"v_cmp_ne_u32 vcc, 1, v{X+1}")
    A("s_mov_b32 s56, 0")
    A("s_cmp_eq_u64 vcc, 0")
    if final:
        A(f"s_cbranch_scc1 L_{name}_polled{sfx}")
        A("s_sleep 32")
        A(f"s_branch L_{name}_poll{sfx}")
    else:
        A(f"s_cbranch_scc0 L_{name}_pdone{sfx}")
    a.label(f"L_{name}_polled{sfx}")
    A("s_mov_b32 s56, 1")
    A(f"v_lshlrev_b32 v{X}, 4, v0")
    A("s_lshl_b32 s54, s9, 16")
    A(f"s_add_u32 s54, s54, {KVSUM}")
    for p in range(8):
        A(f"s_add_u32 s55, s54, {p*8192}")
        A(f"buffer_load_dwordx4 {vr(GB[0]+4*p,4)}, v{X}, s[4:7], s55 offen sc0 sc1")
    a.label(f"L_{name}_pdone{sfx}")

def store_o(a, ctx, PK, which, vm=None):
    A = a.emit; vr = ctx["vr"]; T = ctx["T"]; vRow = ctx["vRow"]
    X = T + 4
    A(f"v_lshrrev_b32 v{X}, 4, v{vRow}")
    A("s_mov_b32 s27, 40960")
    A(f"v_mul_lo_u32 v{X}, v{X}, s27")
    A(f"v_and_b32 v{X+1}, 15, v{vRow}")
    A(f"v_lshlrev_b32 v{X+1}, 4, v{X+1}")
    A(f"v_add_u32 v{X}, v{X}, v{X+1}")
    A("s_mul_i32 s28, s9, 5")
    if which: A("s_add_u32 s28, s28, 160")
    def qoff(dst, q):
        A(f"s_lshr_b32 {dst}, {q}, 3")
        A(f"s_lshl_b32 {dst}, {dst}, 10")
        A(f"s_and_b32 s33, {q}, 7")
        A(f"s_lshr_b32 s33, s33, 1")
        A(f"s_lshl_b32 s33, s33, 8")
        A(f"s_add_u32 {dst}, {dst}, s33")
        A(f"s_and_b32 s33, {q}, 1")
        A(f"s_lshl_b32 s33, s33, 3")
        A(f"s_add_u32 {dst}, {dst}, s33")
    A(f"s_mov_b32 s34, {OCAT}")
    for aa in range(3):
        A(f"s_add_u32 s29, s28, {2*aa}")
        qoff("s30", "s29")
        A("s_add_u32 s29, s29, 1")
        qoff("s31", "s29")
        A(f"v_mov_b32 v{X+1}, s30")
        A(f"v_mov_b32 v{X+2}, s31")
        A(f"v_cndmask_b32 v{X+1}, v{X+1}, v{X+2}, s[16:17]")
        A(f"v_add_u32 v{X+1}, v{X+1}, v{X}")
        if aa == 2: A("s_mov_b32 exec_hi, 0")
        A(f"buffer_store_dwordx2 {vr(PK+2*aa,2)}, v{X+1}, s[4:7], s34 offen")
        if vm is not None: vm.q.append("ob")
        if aa == 2: A("s_mov_b32 exec_hi, -1")

def gen_linb_sum(a, ctx):
    A = a.emit; vr = ctx["vr"]; T = ctx["T"]; GB = ctx["GB"]; LDS_W = ctx["LDS_W"]
    X = T + 4
    SUM = LDS_W + 49152
    A("s_waitcnt vmcnt(0)")
    ctx["vm"].q = []
    G0 = GB[0]
    for i in range(4):
        for p in range(1, 8):
            A(f"v_add_f32 v{G0+i}, v{G0+i}, v{G0+4*p+i}")
    A(f"v_lshlrev_b32 v{X}, 4, v0")
    A(f"v_add_u32 v{X}, {SUM}, v{X}")
    A(f"ds_write_b128 v{X}, {vr(G0,4)}")

def gen_linb_final(a, ctx):
    A = a.emit; vr = ctx["vr"]; T = ctx["T"]; GB = ctx["GB"]; vG = ctx["vG"]; LDS_W = ctx["LDS_W"]; LDS_E = ctx["LDS_E"]
    X = T
    SUM = LDS_W + 49152
    a.fence()
    A("s_mul_i32 s59, s8, 2560")
    A(f"s_add_u32 s59, s59, {LDS_E}")
    A(f"v_lshlrev_b32 v{X+2}, 2, v1")
    A(f"v_add_u32 v{X+2}, s59, v{X+2}")
    E = 148
    for si in range(2):
        for i in range(5):
            A(f"ds_read_b32 v{E+6*si+i}, v{X+2} offset:{(si*5+i)*256}")
        A(f"v_mov_b32 v{E+6*si+5}, 0")
    A(f"v_lshrrev_b32 v{X+3}, 3, v2")
    A(f"v_and_b32 v{X+4}, 3, v2")
    A(f"v_lshl_add_u32 v{X+3}, v{X+3}, 2, v{X+4}")
    A(f"v_lshlrev_b32 v{X+3}, 8, v{X+3}")
    A(f"v_bfe_u32 v{X+4}, v2, 2, 1")
    A(f"v_lshl_add_u32 v{X+3}, v{X+4}, 7, v{X+3}")
    A(f"v_lshl_add_u32 v{X+3}, v3, 4, v{X+3}")
    A(f"v_add_u32 v{X+3}, {SUM}, v{X+3}")
    F = 224
    for si in range(2):
        for aa in range(3):
            A(f"ds_read_b128 {vr(F+(si*3+aa)*4,4)}, v{X+3} offset:{si*4096+aa*32}")
    A("v_cmp_eq_u32 vcc, 21, v2")
    A("s_waitcnt lgkmcnt(0)")
    for i in range(24):
        A(f"v_cndmask_b32 v{F+i}, v{F+i}, 1.0, vcc")
    AF = 160
    for j in range(6):
        A(f"v_cvt_pk_bf16_f32 v{AF+2*j}, v{F+4*j}, v{F+4*j+1}")
        A(f"v_cvt_pk_bf16_f32 v{AF+2*j+1}, v{F+4*j+2}, v{F+4*j+3}")
    NP, NN = GB[0], GB[1]
    for si, ACC in enumerate((NP, NN)):
        for aa in range(3):
            c = "0" if aa == 0 else vr(ACC,16)
            A(f"v_mfma_f32_32x32x8bf16_1k {vr(ACC,16)}, {vr(AF+2*(si*3+aa),2)}, {vr(E+6*si+2*aa,2)}, {c}")
    t = X
    for k, src in enumerate((NP+8, NP+9, NN+8, NN+9)):
        A(f"v_mov_b32 v{t+2*k}, v{src}")
        A(f"v_mov_b32 v{t+2*k+1}, v{src}")
        A(f"v_permlane32_swap_b32 v{t+2*k}, v{t+2*k+1}")
    dP, sP, dN, sN = t+1, t+3, t+5, t+7
    A(f"v_rcp_f32 v{sP}, v{sP}")
    A(f"v_rcp_f32 v{sN}, v{sN}")
    A(f"v_mul_f32 v{dP}, v{dP}, v{sP}")
    A(f"v_fma_f32 v{dP}, v{dN}, v{sN}, v{dP}")
    A(f"v_add_f32 v{dP}, 0x358637bd, v{dP}")
    A(f"v_rcp_f32 v{dP}, v{dP}")
    A(f"v_sub_f32 v{dN}, 1.0, v{vG}")
    A(f"v_mul_f32 v{dP}, v{dP}, v{dN}")
    A(f"v_mul_f32 v{sP}, v{sP}, v{dP}")
    A(f"v_mul_f32 v{sN}, v{sN}, v{dP}")
    for r in range(12):
        A(f"v_mul_f32 v{NP+r}, v{NP+r}, v{sP}")
        A(f"v_fma_f32 v{NP+r}, v{NN+r}, v{sN}, v{NP+r}")
    PK = 172
    for i in range(6):
        A(f"v_cvt_pk_bf16_f32 v{PK+i}, v{NP+2*i}, v{NP+2*i+1}")
    store_o(a, ctx, PK, 1, vm=ctx["vm"])
    a.fence()
```

```python
from dsl import Asm
from layout import *

TILE_B = 3072
STAGE_B = 8 * TILE_B
LDS_E = 0
LDS_W = 20480
RING = LDS_W + 65536
LDS_WA = RING + 3 * STAGE_B
LDS_TOTAL = LDS_WA + 3072 + 1024
LOG2E = 0x3fb8aa3b
NPER = 4
KKP = 5

class VMQ:
    def __init__(self, a): self.a = a; self.q = []
    def issue(self, text, tag):
        self.a.emit(text); self.q.append(tag)
    def wait(self, tag):
        idx = [i for i, t in enumerate(self.q) if t == tag]
        if not idx: return
        n = len(self.q) - 1 - idx[-1]
        assert n <= 63
        self.a.emit(f"s_waitcnt vmcnt({n})")
        self.q = self.q[idx[-1] + 1:]
    def wait_all(self):
        self.a.emit("s_waitcnt vmcnt(0)"); self.q = []

def gen_k2(name="att_kernel"):
    a = Asm(); A = a.emit
    vm = VMQ(a)
    def vr(b, n): return f"v[{b}:{b+n-1}]"
    Q1 = [4, 8]; Q2 = [12, 14]
    O = [16, 32]; S = [48, 64]; P = 80
    K1 = [88, 92]; K2 = [96, 98]; V = [100, 108]
    GB = [116, 132]
    XF = [148, 156, 164, 224, 232, 240]
    WF = 172
    AK1 = [188, 189, 190]; AK2 = [191, 192, 193]; AV = [194, 195, 196]
    AW = [[197, 198], [199, 200]]
    vDma = 201; vDmaW = [202, 203, 204, 205]; vX = 206; vG = 207; vRow = 208
    lK1, lK2, lV = 209, 210, 211
    T = 212
    a.raw(f".globl {name}\n.p2align 8\n.type {name},@function\n{name}:")
    if TRACE: a.trace_begin()
    A("s_cmp_ge_u32 s2, 256")
    A(f"s_cbranch_scc1 L_{name}_exit")
    if PROF2: A("s_memtime s[42:43]")
    A("s_load_dwordx2 s[4:5], s[0:1], 80")
    A("s_load_dwordx2 s[72:73], s[0:1], 0")
    A("s_load_dwordx4 s[76:79], s[0:1], 32")
    A("s_load_dwordx2 s[64:65], s[0:1], 72")
    A("v_and_b32 v1, 63, v0")
    A("v_lshrrev_b32 v3, 6, v0")
    A("v_readfirstlane_b32 s8, v3")
    A("s_and_b32 s62, s2, 7")
    A("s_lshr_b32 s63, s2, 3")
    A("s_lshl_b32 s9, s62, 2")
    A("s_and_b32 s10, s63, 3")
    A("s_add_u32 s9, s9, s10")
    A("s_lshr_b32 s10, s63, 2")
    A("s_and_b32 s37, s8, 3")
    A("s_lshr_b32 s38, s8, 2")
    A("s_lshl_b32 s39, s37, 1")
    A("s_add_u32 s39, s39, s38")
    A("v_and_b32 v2, 31, v1")
    A("v_lshrrev_b32 v3, 5, v1")
    A("v_cmp_lt_u32 s[16:17], 31, v1")
    A(f"v_lshlrev_b32 v{lK1}, 4, v1")
    A(f"v_lshlrev_b32 v{lK2}, 4, v2")
    A(f"v_lshl_add_u32 v{lK2}, v3, 3, v{lK2}")
    A(f"v_add_u32 v{lK2}, 1024, v{lK2}")
    A(f"v_min_u32 v{T+1}, 21, v2")
    A(f"v_mul_u32_u24 v{T}, 384, v3")
    A(f"v_lshl_add_u32 v{lV}, v{T+1}, 4, v{T}")
    A(f"v_add_u32 v{lV}, 1536, v{lV}")
    A("s_waitcnt lgkmcnt(0)")
    if PROF2: A("s_memtime s[48:49]")
    A("s_mov_b32 s6, 0x10000000"); A("s_mov_b32 s7, 0x00020000")
    A("s_mov_b32 s66, 256"); A("s_mov_b32 s67, 0x00020000")
    A(f"s_mov_b32 s74, {2048*1280}"); A("s_mov_b32 s75, 0x00020000")
    A("s_mul_i32 s57, s9, 800")
    A("s_add_u32 s44, s78, s57"); A("s_addc_u32 s45, s79, 0"); A("s_mov_b32 s46, 800"); A("s_mov_b32 s47, 0x00020000")
    from k2fm import fm_preload, fm_pack
    fm_preload(a, dict(vm=vm, T=T, LDS_WA=LDS_WA, name=name))
    A(f"s_mul_i32 s11, s9, {64*TILE_B}")
    A(f"s_add_u32 s11, s11, {KVIMG}")
    A("s_mul_i32 s18, s8, 3072")
    A(f"v_add_u32 v{vDma}, s18, v{lK1}")
    A("s_lshl_b32 s19, s10, 3")
    A("s_lshl_b32 s20, s37, 1")
    A("s_add_u32 s20, s20, s19")
    A("s_lshl_b32 s21, s9, 6")
    A("s_add_u32 s20, s20, s21")
    A("s_mul_i32 s20, s20, 1536")
    A(f"s_add_u32 s20, s20, {QIMG}")
    for t in range(2):
        vm.issue(f"buffer_load_dwordx4 {vr(Q1[t],4)}, v{lK1}, s[4:7], s20 offen offset:{t*1536}", "q")
        vm.issue(f"buffer_load_dwordx2 {vr(Q2[t],2)}, v{lK2}, s[4:7], s20 offen offset:{t*1536}", "q")
    def dma_kv(st):
        A(f"s_add_u32 m0, s18, {RING + (st%3)*STAGE_B}")
        A(f"s_add_u32 s23, s11, {st*STAGE_B}")
        for p in range(3):
            vm.issue(f"buffer_load_dwordx4 v{vDma}, s[4:7], s23 offen offset:{p*1024} lds", f"kv{st}")
    dma_kv(0)
    if PROF2: A("s_memtime s[50:51]")
    A("s_add_u32 s19, s19, s39")
    A("s_lshl_b32 s21, s19, 5")
    A(f"v_add_u32 v{vRow}, s21, v2")
    A(f"v_lshlrev_b32 v{T}, 2, v{vRow}")
    A(f"s_mov_b32 s22, {GATE}")
    vm.issue(f"buffer_load_dword v{vG}, v{T}, s[4:7], s22 offen", "g")
    ctx0 = dict(vm=vm, T=T, LDS_WA=LDS_WA, vr=vr, name=name)
    A(f"s_mul_i32 s27, s38, {4*TILE_B}")
    for b in range(3):
        A(f"s_add_u32 s29, s27, {RING + b*STAGE_B}")
        A(f"v_add_u32 v{AK1[b]}, s29, v{lK1}")
        A(f"v_add_u32 v{AK2[b]}, s29, v{lK2}")
        A(f"v_add_u32 v{AV[b]}, s29, v{lV}")
    for t in range(2):
        for r in range(16):
            A(f"v_mov_b32 v{O[t]+r}, 0")
    if PROF2: A("s_memtime s[68:69]")
    vm.wait("kv0")
    if PROF2: A("s_memtime s[70:71]")
    for t in range(2):
        A(f"v_cndmask_b32 v{Q2[t]}, v{Q2[t]}, 0, s[16:17]")
        A(f"v_cndmask_b32 v{Q2[t]+1}, v{Q2[t]+1}, 0, s[16:17]")
    A("s_barrier")
    A(f"v_add_u32 v{T}, {RING}, v{lK1}")
    A(f"v_add_u32 v{T+1}, {RING}, v{lK2}")
    A(f"ds_read_b128 {vr(K1[0],4)}, v{T}")
    A(f"ds_read_b64 {vr(K2[0],2)}, v{T+1}")
    A("s_waitcnt lgkmcnt(0)")
    for t in range(2):
        A(f"v_mfma_f32_32x32x16_bf16 {vr(S[t],16)}, {vr(K1[0],4)}, {vr(Q1[t],4)}, 0")
        A(f"v_mfma_f32_32x32x8bf16_1k {vr(S[t],16)}, {vr(K2[0],2)}, {vr(Q2[t],2)}, {vr(S[t],16)}")
    A(f"ds_read_b128 {vr(K1[0],4)}, v{AK1[0]}")
    A(f"ds_read_b64 {vr(K2[0],2)}, v{AK2[0]}")
    A(f"ds_read_b128 {vr(V[0],4)}, v{AV[0]}")
    A(f"ds_read_b128 {vr(V[0]+4,4)}, v{AV[0]} offset:768")
    def setmax_from(t, q2):
        A(f"v_mov_b32 v{T+11}, v{t}")
        A(f"v_permlane32_swap_b32 v{t}, v{T+11}")
        A(f"v_max_f32 v{t}, v{t}, v{T+11}")
        A(f"v_sub_f32 v{t}, 0, v{t}")
        A(f"v_cvt_pk_bf16_f32 v{t}, v{t}, 0")
        A(f"v_cndmask_b32 v{q2}, v{q2}, v{t}, s[16:17]")
    for t in range(2):
        Sb = S[t]
        A(f"v_max3_f32 v{T}, v{Sb}, v{Sb+1}, v{Sb+2}")
        for r in range(3, 15, 2):
            A(f"v_max3_f32 v{T}, v{T}, v{Sb+r}, v{Sb+r+1}")
        A(f"v_max_f32 v{T}, v{T}, v{Sb+15}")
        setmax_from(T, Q2[t])
    A("s_waitcnt lgkmcnt(0)")
    A(f"v_mfma_f32_32x32x16_bf16 {vr(S[0],16)}, {vr(K1[0],4)}, {vr(Q1[0],4)}, 0")
    A(f"v_mfma_f32_32x32x8bf16_1k {vr(S[0],16)}, {vr(K2[0],2)}, {vr(Q2[0],2)}, {vr(S[0],16)}")
    for i in range(4):
        A(f"v_mov_b32 v{P+4+i}, 0")
        A(f"v_mov_b32 v{V[1]+4+i}, 0")
    A(f"v_mov_b32 v{S[1]+14}, 0")
    A(f"v_mov_b32 v{S[1]+15}, 0")
    a.fence()

    hooks_fm = 8 + 6

    from k2fm import gen_fm2, gen_reduce_publish, gen_signal, gen_linb_prefetch, gen_linb_final, fm_preload, gen_signal_pre, fm_loads, gen_linb_sum
    ctx = dict(lK1=lK1, lK2=lK2, lV=lV, LDS_WA=LDS_WA, vr=vr, GB=GB, T=T, vG=vG, vRow=vRow, name=name, vm=vm, XF=XF, WF=WF, LDS_W=LDS_W, LDS_E=LDS_E)

    if os.environ.get('PRIO'):
        A("s_cmp_lt_u32 s8, 4")
        A(f"s_cbranch_scc1 L_{name}_np")
        A("s_setprio 1")
        a.label(f"L_{name}_np")
    for st in range(8):
        for u in range(8):
            U = st*8 + u
            p = u & 1; n = 1 - p; kt = u >> 1
            buf = st % 3; nbuf = (st + 1) % 3
            if PROF2 and u == 0: A(f"s_memtime s[{84+2*st}:{85+2*st}]") if st < 8 else None
            A("s_waitcnt lgkmcnt(0)")
            if u == 6 and st < 7:
                vm.wait(f"kv{st+1}")
                if U == hooks_fm + 16: gen_signal_pre(a, ctx)
                A("s_barrier")
                if st + 2 < 8: dma_kv(st + 2)
            if U == 0: dma_kv(1)
            if U == 1: fm_loads(a, ctx)
            if U == 6: fm_pack(a, dict(ctx0, regbase=224))
            if U == hooks_fm: gen_fm2(a, ctx)
            if U == hooks_fm + 8: gen_reduce_publish(a, ctx)
            if U == hooks_fm + 16: gen_signal(a, ctx)
            if U == 40:
                A("s_mov_b32 s56, 0")
                gen_linb_prefetch(a, ctx, final=True)
            if U == 46: gen_linb_sum(a, ctx)
            if U == 54: gen_linb_final(a, ctx)
            if p == 0:
                ktn = kt + 1
                bb, kk_ = (buf, ktn) if ktn < 4 else (nbuf, 0)
                if not (st == 7 and ktn == 4):
                    A(f"ds_read_b128 {vr(K1[ktn%2],4)}, v{AK1[bb]} offset:{kk_*TILE_B}")
                    A(f"ds_read_b64 {vr(K2[ktn%2],2)}, v{AK2[bb]} offset:{kk_*TILE_B}")
            else:
                ktn = kt + 1
                bb, kk_ = (buf, ktn) if ktn < 4 else (nbuf, 0)
                if not (st == 7 and ktn == 4):
                    A(f"ds_read_b128 {vr(V[ktn%2],4)}, v{AV[bb]} offset:{kk_*TILE_B}")
            Sb = S[p]; Sp = S[n]
            ktq = (u + 1) >> 1
            Kset = ktq % 2
            last = (st == 7 and u == 7)
            def ex(r): A(f"v_exp_f32 v{Sb+r}, v{Sb+r}")
            def cv(i): A(f"v_cvt_pk_bf16_f32 v{P+i}, v{Sb+2*i}, v{Sb+2*i+1}")
            A(f"v_cvt_pk_bf16_f32 v{P+7}, v{Sp+14}, v{Sp+15}")
            if not last:
                A(f"v_mfma_f32_32x32x16_bf16 {vr(S[n],16)}, {vr(K1[Kset],4)}, {vr(Q1[n],4)}, 0")
            ex(0); ex(1); ex(2); cv(0); ex(3)
            ktp = ((u - 1) >> 1) % 4 if u > 0 else 3
            A(f"v_mfma_f32_32x32x16_bf16 {vr(O[n],16)}, {vr(V[ktp%2]+4,4)}, {vr(P+4,4)}, {vr(O[n],16)}")
            if p == 1:
                ktn = kt + 1
                bb, kk_ = (buf, ktn) if ktn < 4 else (nbuf, 0)
                if not (st == 7 and ktn == 4):
                    A(f"ds_read_b128 {vr(V[ktn%2]+4,4)}, v{AV[bb]} offset:{kk_*TILE_B+768}")
            ex(4); cv(1); ex(5)
            ex(6); cv(2); ex(7)
            if not last:
                A(f"v_mfma_f32_32x32x8bf16_1k {vr(S[n],16)}, {vr(K2[Kset],2)}, {vr(Q2[n],2)}, {vr(S[n],16)}")
            ex(8); cv(3); ex(9)
            ex(10); cv(4); ex(11)
            A(f"v_mfma_f32_32x32x16_bf16 {vr(O[p],16)}, {vr(V[kt%2],4)}, {vr(P,4)}, {vr(O[p],16)}")
            ex(12); cv(5); ex(13)
            ex(14); cv(6); ex(15)
    if PROF2: A("s_memtime s[30:31]")
    if PROF2: A("s_waitcnt lgkmcnt(0)")
    if PROF2: A("s_mov_b32 s100, s30")
    A(f"v_cvt_pk_bf16_f32 v{P+7}, v{S[1]+14}, v{S[1]+15}")
    A(f"v_mfma_f32_32x32x16_bf16 {vr(O[1],16)}, {vr(V[1]+4,4)}, {vr(P+4,4)}, {vr(O[1],16)}")
    a.fence()
    CMB = LDS_W
    A(f"v_lshlrev_b32 v{T}, 2, v1")
    A("s_mul_i32 s27, s37, 6144")
    A("s_mul_i32 s29, s38, 3072")
    A("s_add_u32 s27, s27, s29")
    A(f"s_add_u32 s27, s27, {CMB}")
    A(f"v_add_u32 v{T+1}, s27, v{T}")
    A(f"s_xor_b32 s29, s27, 0")
    A("s_mul_i32 s29, s37, 6144")
    A("s_xor_b32 s30, s38, 1")
    A("s_mul_i32 s30, s30, 3072")
    A("s_add_u32 s29, s29, s30")
    A(f"s_add_u32 s29, s29, {CMB}")
    A(f"v_add_u32 v{T+2}, s29, v{T}")
    A("s_cmp_eq_u32 s38, 0")
    A(f"s_cbranch_scc1 L_{name}_c0")
    for r in range(12):
        A(f"ds_write_b32 v{T+1}, v{O[0]+r} offset:{r*256}")
    for r in range(16):
        A(f"v_mov_b32 v{O[0]+r}, v{O[1]+r}")
    for r in range(4): A(f"v_mov_b32 v{Q1[0]+r}, v{Q1[1]+r}")
    for r in range(2): A(f"v_mov_b32 v{Q2[0]+r}, v{Q2[1]+r}")
    A(f"s_branch L_{name}_c1")
    a.label(f"L_{name}_c0")
    for r in range(12):
        A(f"ds_write_b32 v{T+1}, v{O[1]+r} offset:{r*256}")
    a.label(f"L_{name}_c1")
    A("s_waitcnt lgkmcnt(0)")
    A("s_barrier")
    for r in range(12):
        A(f"ds_read_b32 v{S[0]+r}, v{T+2} offset:{r*256}")
    A("s_waitcnt lgkmcnt(0)")
    for r in range(12):
        A(f"v_add_f32 v{O[0]+r}, v{O[0]+r}, v{S[0]+r}")
    OO = O[0]; QQ1 = Q1[0]; QQ2 = Q2[0]
    A("s_mov_b32 s25, 0")
    a.label(f"L_{name}_epi")
    a.fence()
    A(f"v_add_f32 v{T}, |v{OO}|, |v{OO+1}|")
    for r in range(2, 9):
        A(f"v_add_f32 v{T}, v{T}, |v{OO+r}|")
    A(f"v_add_f32 v{T+1}, |v{OO+9}|, |v{OO+10}|")
    A(f"v_add_f32 v{T+1}, v{T+1}, |v{OO+11}|")
    A(f"v_cndmask_b32 v{T+1}, v{T+1}, 0, s[16:17]")
    A(f"v_add_f32 v{T}, v{T}, v{T+1}")
    A("s_mov_b32 s26, 0x7f000000")
    A(f"v_cmp_nle_f32 vcc, v{T}, s26")
    A("s_cmp_lg_u32 s25, 0")
    A(f"s_cbranch_scc1 L_{name}_store")
    A(f"s_cbranch_vccnz L_{name}_fallback")
    a.label(f"L_{name}_store")
    a.fence()
    A(f"v_mov_b32 v{T}, v{OO+8}")
    A(f"v_mov_b32 v{T+1}, v{OO+8}")
    A(f"v_permlane32_swap_b32 v{T}, v{T+1}")
    A(f"v_rcp_f32 v{T+1}, v{T+1}")
    A(f"v_mul_f32 v{T+1}, v{T+1}, v{vG}")
    for r in range(12):
        A(f"v_mul_f32 v{OO+r}, v{OO+r}, v{T+1}")
    PK = S[0]
    for i in range(6):
        A(f"v_cvt_pk_bf16_f32 v{PK+i}, v{OO+2*i}, v{OO+2*i+1}")
    from k2fm import store_o
    store_o(a, ctx, PK, 0)
    if PROF2: A("s_memtime s[30:31]")
    if PROF2: A("s_waitcnt lgkmcnt(0)")
    if PROF2: A("s_mov_b32 s101, s30")
    A(f"s_branch L_{name}_end")
    a.label(f"L_{name}_fallback")
    a.fence()
    A("s_mov_b32 s25, 1")
    A(f"v_cndmask_b32 v{QQ2}, v{QQ2}, 0, s[16:17]")
    A(f"v_mov_b32 v{T+4}, 0xff800000")
    A("s_mov_b32 s35, s11")
    A("s_mov_b32 s36, 0")
    a.label(f"L_{name}_fb1")
    a.fence()
    A(f"buffer_load_dwordx4 {vr(K1[0],4)}, v{lK1}, s[4:7], s35 offen")
    A(f"buffer_load_dwordx2 {vr(K2[0],2)}, v{lK2}, s[4:7], s35 offen")
    A("s_waitcnt vmcnt(0)")
    A(f"v_mfma_f32_32x32x16_bf16 {vr(S[0],16)}, {vr(K1[0],4)}, {vr(QQ1,4)}, 0")
    A(f"v_mfma_f32_32x32x8bf16_1k {vr(S[0],16)}, {vr(K2[0],2)}, {vr(QQ2,2)}, {vr(S[0],16)}")
    for r in range(0, 16, 2):
        A(f"v_max3_f32 v{T+4}, v{T+4}, v{S[0]+r}, v{S[0]+r+1}")
    A(f"s_add_u32 s35, s35, {TILE_B}")
    A("s_add_u32 s36, s36, 1")
    A("s_cmp_lt_u32 s36, 64")
    A(f"s_cbranch_scc1 L_{name}_fb1")
    a.fence()
    setmax_from(T+4, QQ2)
    for r in range(16):
        A(f"v_mov_b32 v{OO+r}, 0")
    A("s_mov_b32 s35, s11")
    A("s_mov_b32 s36, 0")
    a.label(f"L_{name}_fb2")
    a.fence()
    A(f"buffer_load_dwordx4 {vr(K1[0],4)}, v{lK1}, s[4:7], s35 offen")
    A(f"buffer_load_dwordx2 {vr(K2[0],2)}, v{lK2}, s[4:7], s35 offen")
    A(f"buffer_load_dwordx4 {vr(V[0],4)}, v{lV}, s[4:7], s35 offen")
    A(f"buffer_load_dwordx4 {vr(V[0]+4,4)}, v{lV}, s[4:7], s35 offen offset:768")
    A("s_waitcnt vmcnt(0)")
    A(f"v_mfma_f32_32x32x16_bf16 {vr(S[0],16)}, {vr(K1[0],4)}, {vr(QQ1,4)}, 0")
    A(f"v_mfma_f32_32x32x8bf16_1k {vr(S[0],16)}, {vr(K2[0],2)}, {vr(QQ2,2)}, {vr(S[0],16)}")
    for r in range(16):
        A(f"v_exp_f32 v{S[0]+r}, v{S[0]+r}")
    for i in range(8):
        A(f"v_cvt_pk_bf16_f32 v{P+i}, v{S[0]+2*i}, v{S[0]+2*i+1}")
    A(f"v_mfma_f32_32x32x16_bf16 {vr(OO,16)}, {vr(V[0],4)}, {vr(P,4)}, {vr(OO,16)}")
    A(f"v_mfma_f32_32x32x16_bf16 {vr(OO,16)}, {vr(V[0]+4,4)}, {vr(P+4,4)}, {vr(OO,16)}")
    A(f"s_add_u32 s35, s35, {TILE_B}")
    A("s_add_u32 s36, s36, 1")
    A("s_cmp_lt_u32 s36, 64")
    A(f"s_cbranch_scc1 L_{name}_fb2")
    A(f"s_branch L_{name}_epi")
    a.label(f"L_{name}_end")
    if PROF2:
        A("s_memtime s[40:41]")
        A("s_waitcnt lgkmcnt(0)")
        for i in range(8):
            A(f"v_mov_b32 v{16+i}, s{84+2*i}")
        A("v_mov_b32 v24, s40")
        A("v_mov_b32 v25, s42")
        A("v_mov_b32 v26, s100")
        A("v_mov_b32 v27, s101")
        A("v_mov_b32 v28, s25")
        A("v_mov_b32 v29, s48")
        A("v_mov_b32 v31, s50")
        A("v_mov_b32 v32, s68")
        A("v_mov_b32 v33, s70")
        A("s_lshl_b32 s52, s2, 3")
        A("s_add_u32 s52, s52, s8")
        A("s_lshl_b32 s52, s52, 6")
        A("s_add_u32 s52, s52, 0x8000000")
        A("v_mov_b32 v30, 0")
        A("s_mov_b64 exec, 1")
        A("buffer_store_dwordx4 v[16:19], v30, s[4:7], s52 offen")
        A("buffer_store_dwordx4 v[20:23], v30, s[4:7], s52 offen offset:16")
        A("buffer_store_dwordx4 v[24:27], v30, s[4:7], s52 offen offset:32")
        A("v_mov_b32 v34, v29")
        A("v_mov_b32 v35, v31")
        A("v_mov_b32 v36, v32")
        A("v_mov_b32 v37, v33")
        A("buffer_store_dword v28, v30, s[4:7], s52 offen offset:48")
        A("s_add_u32 s52, s52, 0x100000")
        A("buffer_store_dwordx4 v[34:37], v30, s[4:7], s52 offen")
    if TRACE: a.trace_end(1)
    a.label(f"L_{name}_exit")
    A("s_endpgm")
    desc = f""".section .rodata,"a"
.p2align 6
.amdhsa_kernel {name}
  .amdhsa_next_free_vgpr 256
  .amdhsa_next_free_sgpr 102
  .amdhsa_accum_offset 256
  .amdhsa_group_segment_fixed_size 0
  .amdhsa_kernarg_size 88
  .amdhsa_user_sgpr_count 2
  .amdhsa_user_sgpr_kernarg_segment_ptr 1
  .amdhsa_system_sgpr_workgroup_id_x 1
.end_amdhsa_kernel
.text
"""
    return a.text(), desc, a.nops
```
